```python
import torch

def _softmax(x, axis=-1):
    return torch.softmax(x, dim=axis)
def _gelu(x):
    return torch.nn.functional.gelu(x, approximate="tanh")
def _silu(x):
    return torch.nn.functional.silu(x)
def _sigmoid(x):
    return torch.sigmoid(x)
def _layernorm(x, axis=-1, eps=1e-5):
    m = x.mean(dim=axis, keepdim=True)
    v = x.var(dim=axis, keepdim=True, unbiased=False)
    return (x - m) / torch.sqrt(v + eps)
def _scatter_add(tgt, idx, src, axis=0):
    return tgt.clone().index_add_(axis, idx, src)
def _segment_sum(src, seg, n):
    out = torch.zeros((n,) + src.shape[1:], dtype=src.dtype)
    return out.index_add_(0, seg, src)
def _pad(x, pw):
    flat = tuple(v for pair in reversed(pw) for v in pair)
    return torch.nn.functional.pad(x, flat)

kernel_name = 'recurrent_scan__gqa_block_cached__glu_gated_geglu__decode'

def setup_inputs():

    _w = (lambda a: (lambda t: t.to(torch.bfloat16) if t.is_floating_point() else t)(torch.as_tensor(a)))
    def _A_setup():
        B, Sq, D = 4, 1, 1024
        Hq, Hkv, Sk, Dh = 32, 4, 8192, 128
        assert Hq % Hkv == 0, (Hq, Hkv)
        return {
            "x": _w((lambda *s: torch.randn(*s, dtype=torch.bfloat16) * 0.4)(B, Sq, D)),
            "k_cache": _w((lambda *s: torch.randn(*s, dtype=torch.bfloat16) * 1.6)(B, Hkv, Sk, Dh)),
            "v_cache": _w((lambda *s: torch.randn(*s, dtype=torch.bfloat16) * 1.6)(B, Hkv, Sk, Dh)),
            "wq": _w((lambda *s: torch.randn(*s, dtype=torch.bfloat16) * 1.6)(D, Hq * Dh) * (D ** -0.5)),
            "wo": _w((lambda *s: torch.randn(*s, dtype=torch.bfloat16) * 1.6)(Hq * Dh, D) * ((Hq * Dh) ** -0.5)),
        }
    _A_in = _A_setup()

    def _B_setup():
        B, S, Dm, Df = 4, 1, 1024, 3584
        return {
            "x": _w((lambda *s: torch.randn(*s, dtype=torch.bfloat16) * 0.4)(B, S, Dm)),
            "w_gate": _w((lambda *s: torch.randn(*s, dtype=torch.bfloat16) * 1.6)(Dm, Df) * (Dm ** -0.5)),
            "w_up": _w((lambda *s: torch.randn(*s, dtype=torch.bfloat16) * 1.6)(Dm, Df) * (Dm ** -0.5)),
            "w_down": _w((lambda *s: torch.randn(*s, dtype=torch.bfloat16) * 1.6)(Df, Dm) * (Df ** -0.5)),
        }
    _B_in = _B_setup()

    return {
        "A_x": _A_in["x"],
        "A_k_cache": _A_in["k_cache"],
        "A_v_cache": _A_in["v_cache"],
        "A_wq": _A_in["wq"],
        "A_wo": _A_in["wo"],
        "B_x": _B_in["x"],
        "B_w_gate": _B_in["w_gate"],
        "B_w_up": _B_in["w_up"],
        "B_w_down": _B_in["w_down"],
    }

def reference(A_x, A_k_cache, A_v_cache, A_wq, A_wo, B_x, B_w_gate, B_w_up, B_w_down):
    def _A_ref(x, k_cache, v_cache, wq, wo):
        B, Sq, D = x.shape
        Hq, Dh = 32, 128
        Hkv = k_cache.shape[1]
        rep = Hq // Hkv
        q = (lambda x, *d: x.permute(*d))((x @ wq).reshape(B, Sq, Hq, Dh), 0, 2, 1, 3)
        k = (lambda x, n, axis: torch.repeat_interleave(x, n, dim=axis))(k_cache, rep, axis=1)
        v = (lambda x, n, axis: torch.repeat_interleave(x, n, dim=axis))(v_cache, rep, axis=1)
        scores = torch.einsum("bhqd,bhkd->bhqk", q, k) * (Dh ** -0.5)
        p = _softmax(scores, axis=-1)
        o = torch.einsum("bhqk,bhkd->bhqd", p, v)
        return (lambda x, *d: x.permute(*d))(o, 0, 2, 1, 3).reshape(B, Sq, Hq * Dh) @ wo

    def _B_ref(x, w_gate, w_up, w_down):
        g = torch.einsum("bsd,df->bsf", x, w_gate)
        u = torch.einsum("bsd,df->bsf", x, w_up)
        h = _gelu(g) * u
        return torch.einsum("bsf,fd->bsd", h, w_down)

    x = A_x
    xn = _layernorm(x, axis=-1)
    s = _A_ref(xn, A_k_cache, A_v_cache, A_wq, A_wo)
    g = _silu(_B_ref(xn, B_w_gate, B_w_up, B_w_down))
    return x + s * g
```

```python
import sys, struct
def f32(x):
    return '0x%08x' % struct.unpack('<I', struct.pack('<f', x))[0]

NAME = 'recurrent_scan__gqa_block_cached__glu_gated_geglu__decode'
OUT = 'cdna_kernels/%s.s' % NAME

OPT = dict(nt=0, stop_after=99)
for a in sys.argv[1:]:
    if '=' in a:
        k, v = a.split('=')
        if k == 'out':
            OUT = v
        else:
            OPT[k] = int(v)

L = []
def e(s):
    L.append('    ' + s)
def lab(s):
    L.append(s + ':')
def cmt(s):
    L.append('    ; ' + s)
_uid = [0]
def uid(p):
    _uid[0] += 1
    return '%s_%d' % (p, _uid[0])

QP = 0x000000
GP = 0x080000
OP = 0x200000
ML = 0x400000
SP = 0x500000
DP = 0x700000

XN = 0
NONCE = 8192
QL = 8448
HL = 10496
OL = 11008
MLL = 11520
P1 = 12288
P2 = 28672
OV = 12288
P3 = 45056
P4 = 53248
LDS_BYTES = 69632

T1 = 24
T2 = 56
VV = 88
TMP = 152
NV = 184
PREG = 12
AF = 20
S_X, S_K, S_V, S_WQ, S_WO, S_WG, S_WU, S_WD, S_OUT, S_DBG, S_WS = 4, 6, 8, 10, 12, 16, 18, 20, 22, 24, 26
S_WAVE, S_TAG, S_SEL0, S_SEL1 = 28, 29, 30, 31
S_T1, S_T2, S_KB, S_VB, S_WDB = 32, 34, 36, 38, 40
S_RS1 = 42
S_SPIN = 62
LOG2E = 0x3fb8aa3b
SPIN_MAX = 200000

NT = ' nt' if OPT['nt'] else ''

def vr(b, n=4):
    return 'v[%d:%d]' % (b, b + n - 1)
def ar(b, n=4):
    return 'a[%d:%d]' % (b, b + n - 1)
def sr(b, n=2):
    return 's[%d:%d]' % (b, b + n - 1)

def add64(dst, base, off_sreg):
    e('s_add_u32 s%d, s%d, s%d' % (dst, base, off_sreg))
    e('s_addc_u32 s%d, s%d, 0' % (dst + 1, base + 1))

def load_block(dst, sbase, rs, vtmp):
    if isinstance(rs, int):
        e('v_mul_u32_u24 v%d, %d, v2' % (vtmp, 8 * rs))
    else:
        e('s_lshl_b32 s59, %s, 3' % rs)
        e('v_mul_u32_u24 v%d, s59, v2' % vtmp)
    e('v_lshl_add_u32 v%d, v3, 4, v%d' % (vtmp, vtmp))
    for i in range(8):
        e('global_load_dwordx4 %s, v%d, %s%s' % (vr(dst + 4 * i), vtmp, sr(sbase), NT))
        if i < 7:
            e('v_add_u32 v%d, %s, v%d' % (vtmp, str(rs), vtmp))

def load_K(vtmp):
    e('v_lshlrev_b32 v%d, 8, v3' % vtmp)
    e('v_lshl_add_u32 v%d, v2, 4, v%d' % (vtmp, vtmp))
    e('v_add_u32 v%d, 0x1000, v%d' % (vtmp, vtmp))
    for T in range(4):
        for t in range(4):
            off = (T & 1) * 4096 - 4096 + t * 64
            e('global_load_dwordx4 %s, v%d, %s offset:%d%s' % (ar(16 * T + 4 * t), vtmp, sr(S_KB), off, NT))
        if T == 1:
            e('v_add_u32 v%d, 0x2000, v%d' % (vtmp, vtmp))

def load_V(vtmp):
    e('v_lshlrev_b32 v%d, 10, v2' % vtmp)
    e('v_lshl_add_u32 v%d, v3, 4, v%d' % (vtmp, vtmp))
    e('v_add_u32 v%d, 0x1000, v%d' % (vtmp, vtmp))
    for B in range(2):
        for j in range(8):
            off = (j >> 2) * 4096 - 4096 + (j & 3) * 256
            e('global_load_dwordx4 %s, v%d, %s offset:%d%s' % (vr(VV + 32 * B + 4 * j), vtmp, sr(S_VB), off, NT))
        if B == 0:
            e('v_add_u32 v%d, 0x2000, v%d' % (vtmp, vtmp))

def transpose_block(T):
    for c in range(8):
        d = c >> 1
        sel = S_SEL0 if c % 2 == 0 else S_SEL1
        for jj in range(4):
            e('v_perm_b32 v%d, v%d, v%d, s%d' % (TMP + 4 * c + jj, T + 4 * (2 * jj + 1) + d, T + 4 * (2 * jj) + d, sel))

def gemv_block(T, A, acc, agpr, first=True):
    transpose_block(T)
    e('s_nop 1')
    f = ar if agpr else vr
    for c in range(8):
        e('v_mfma_f32_16x16x32_bf16 %s, %s, %s, %s' % (f(acc + 4 * c), vr(A), vr(TMP + 4 * c), '0' if first else f(acc + 4 * c)))

def write_part(acc, agpr, lds_base_sreg_expr, vtmp, nlanes_mask, colstride):
    f = ar if agpr else vr
    e('s_nop 7')
    e('s_mov_b32 exec_lo, %s' % nlanes_mask)
    e('s_mov_b32 exec_hi, 0')
    for c in range(8):
        e('ds_write_b128 v%d, %s offset:%d' % (vtmp, f(acc + 4 * c), c * colstride))
    e('s_mov_b64 exec, -1')

def bf16_round(dst, src):
    e('v_cvt_pk_bf16_f32 v%d, v%d, v%d' % (dst, src, src))
    e('v_and_b32 v%d, 0xffff0000, v%d' % (dst, dst))

def row_allreduce(op, v, tmp=None):
    for sh in (8, 4, 2, 1):
        e('s_nop 1')
        e('v_%s_f32_dpp v%d, v%d, v%d row_ror:%d row_mask:0xf bank_mask:0xf' % (op, v, v, v, sh))

def xrow_allreduce(op, v, t):
    e('v_mov_b32 v%d, v%d' % (t, v))
    e('s_nop 1')
    e('v_permlane16_swap_b32 v%d, v%d' % (v, t))
    e('s_nop 1')
    e('v_%s_f32 v%d, v%d, v%d' % (op, v, v, t))
    e('v_mov_b32 v%d, v%d' % (t, v))
    e('s_nop 1')
    e('v_permlane32_swap_b32 v%d, v%d' % (v, t))
    e('s_nop 1')
    e('v_%s_f32 v%d, v%d, v%d' % (op, v, v, t))

def check_tags(regs, vbad, vt):
    first = True
    for rg in regs:
        if first:
            e('v_xor_b32 v%d, s%d, v%d' % (vbad, S_TAG, rg))
            first = False
        else:
            e('v_xor_b32 v%d, s%d, v%d' % (vt, S_TAG, rg))
            e('v_or_b32 v%d, v%d, v%d' % (vbad, vbad, vt))
    e('v_cmp_ne_u32 vcc, 0, v%d' % vbad)

def spin_loop(body_issue, tagregs, vbad, vt, sleep=2):
    top = uid('L_spin'); done = uid('L_spun')
    e('s_mov_b32 s%d, 0' % S_SPIN)
    lab(top)
    body_issue()
    e('s_waitcnt vmcnt(0)')
    check_tags(tagregs, vbad, vt)
    e('s_nop 1')
    e('s_cbranch_vccz %s' % done)
    e('s_add_u32 s%d, s%d, 1' % (S_SPIN, S_SPIN))
    e('s_cmp_ge_u32 s%d, %d' % (S_SPIN, SPIN_MAX))
    e('s_cbranch_scc1 %s' % done)
    e('s_sleep %d' % sleep)
    e('s_branch %s' % top)
    lab(done)

def sigmoid_mul(dst, x, arg, t):
    e('v_exp_f32 v%d, v%d' % (t, arg))
    e('s_nop 0')
    e('v_add_f32 v%d, 1.0, v%d' % (t, t))
    e('v_rcp_f32 v%d, v%d' % (t, t))
    e('s_nop 0')
    e('v_mul_f32 v%d, v%d, v%d' % (dst, x, t))

e('s_cmp_ge_u32 s2, 256')
e('s_cbranch_scc1 L_end')
e('s_load_dwordx16 s[4:19], s[0:1], 0')
e('s_load_dwordx8 s[20:27], s[0:1], 64')
e('v_and_b32 v1, 63, v0')
e('v_lshrrev_b32 v2, 4, v1')
e('v_and_b32 v3, 15, v1')
e('v_lshrrev_b32 v4, 6, v0')
e('s_mov_b32 s%d, 0x05040100' % S_SEL0)
e('v_readfirstlane_b32 s%d, v4' % S_WAVE)
e('s_mov_b32 s%d, 0x07060302' % S_SEL1)
e('s_waitcnt lgkmcnt(0)')

e('s_or_b32 s44, s2, s%d' % S_WAVE)
e('s_cmp_lg_u32 s44, 0')
e('s_cbranch_scc1 L_nononce')
e('s_memrealtime s[44:45]')
e('s_waitcnt lgkmcnt(0)')
e('s_or_b32 s44, s44, 1')
e('v_mov_b32 v4, s44')
e('v_mov_b32 v5, 0')
e('s_mov_b64 exec, 1')
e('global_store_dword v5, v4, %s sc1' % sr(S_DBG))
e('s_mov_b64 exec, -1')
lab('L_nononce')

e('s_sub_u32 s44, s%d, 1' % S_WAVE)
e('s_cmp_lt_u32 s44, 4')
e('s_cselect_b64 exec, -1, 0')
e('s_and_b32 s44, s44, 3')
e('s_lshl_b32 s44, s44, 11')
e('v_lshlrev_b32 v4, 4, v1')
e('v_add_u32 v4, s44, v4')
e('global_load_dwordx4 %s, v4, %s' % (vr(TMP), sr(S_X)))
e('global_load_dwordx4 %s, v4, %s offset:1024' % (vr(TMP + 4), sr(S_X)))
e('s_mov_b64 exec, -1')

e('s_cmp_ge_u32 s2, 128')
e('s_cbranch_scc1 L_t1wo')
e('s_lshr_b32 s44, s2, 5')
e('s_lshl_b32 s44, s44, 8')
e('s_lshl_b32 s45, s%d, 5' % S_WAVE)
e('s_add_u32 s44, s44, s45')
e('s_lshl_b32 s46, s44, 13')
e('s_and_b32 s45, s2, 31')
e('s_lshl_b32 s45, s45, 8')
e('s_add_u32 s46, s46, s45')
add64(S_T1, S_WQ, 46)
e('s_mov_b32 s%d, 8192' % S_RS1)
e('s_mov_b32 s47, s44')
e('s_branch L_t1done')
lab('L_t1wo')
e('s_sub_u32 s44, s2, 128')
e('s_lshr_b32 s45, s44, 1')
e('s_lshl_b32 s45, s45, 6')
e('s_lshr_b32 s46, s%d, 2' % S_WAVE)
e('s_lshl_b32 s46, s46, 5')
e('s_add_u32 s45, s45, s46')
e('s_lshl_b32 s45, s45, 11')
e('s_and_b32 s46, s44, 1')
e('s_lshl_b32 s46, s46, 10')
e('s_add_u32 s45, s45, s46')
e('s_and_b32 s46, s%d, 3' % S_WAVE)
e('s_lshl_b32 s46, s46, 8')
e('s_add_u32 s45, s45, s46')
add64(S_T1, S_WO, 45)
e('s_mov_b32 s%d, 2048' % S_RS1)
e('s_mov_b32 s47, 0')
lab('L_t1done')

e('s_cmp_ge_u32 s2, 112')
e('s_cselect_b32 s48, 1, 0')
e('s_mul_i32 s44, s48, 112')
e('s_sub_u32 s44, s2, s44')
e('s_mul_i32 s45, s44, 2341')
e('s_lshr_b32 s49, s45, 16')
e('s_mul_i32 s45, s49, 28')
e('s_sub_u32 s50, s44, s45')
e('s_lshl_b32 s44, s49, 8')
e('s_lshl_b32 s45, s%d, 5' % S_WAVE)
e('s_add_u32 s51, s44, s45')
e('s_mul_i32 s44, s51, 7168')
e('s_lshl_b32 s45, s50, 8')
e('s_add_u32 s44, s44, s45')
e('s_cmp_eq_u32 s48, 0')
e('s_cselect_b32 s52, s%d, s%d' % (S_WG, S_WU))
e('s_cselect_b32 s53, s%d, s%d' % (S_WG + 1, S_WU + 1))
add64(S_T2, 52, 44)

e('s_lshl_b32 s44, s2, 17')
e('s_lshl_b32 s45, s%d, 14' % S_WAVE)
e('s_add_u32 s44, s44, s45')
add64(S_KB, S_K, 44)
add64(S_VB, S_V, 44)

e('s_lshr_b32 s44, s2, 2')
e('s_lshl_b32 s44, s44, 6')
e('s_lshr_b32 s45, s%d, 1' % S_WAVE)
e('s_and_b32 s45, s45, 1')
e('s_lshl_b32 s45, s45, 5')
e('s_add_u32 s44, s44, s45')
e('s_lshl_b32 s44, s44, 11')
e('s_and_b32 s45, s2, 3')
e('s_lshl_b32 s45, s45, 9')
e('s_add_u32 s44, s44, s45')
e('s_and_b32 s45, s%d, 1' % S_WAVE)
e('s_lshl_b32 s45, s45, 8')
e('s_add_u32 s44, s44, s45')
add64(S_WDB, S_WD, 44)

e('s_cmp_lt_u32 s2, 128')
e('s_cselect_b64 exec, -1, 0')
load_block(T1, S_T1, 's%d' % S_RS1, 4)
e('s_cmp_lt_u32 s2, 224')
e('s_cselect_b64 exec, -1, 0')
load_block(T2, S_T2, 7168, 5)
e('s_cmp_lg_u32 s%d, 0' % S_WAVE)
e('s_cselect_b64 exec, -1, 0')
load_K(6)
e('s_mov_b64 exec, -1')

e('s_sub_u32 s44, s%d, 1' % S_WAVE)
e('s_cmp_ge_u32 s44, 4')
e('s_cbranch_scc1 L_noln')
e('s_waitcnt vmcnt(32)')
X = TMP + 8
for i in range(8):
    e('v_lshlrev_b32 v%d, 16, v%d' % (X + 2 * i, TMP + i))
    e('v_and_b32 v%d, 0xffff0000, v%d' % (X + 2 * i + 1, TMP + i))
e('v_add_f32 v4, v%d, v%d' % (X, X + 1))
for i in range(2, 16):
    e('v_add_f32 v4, v4, v%d' % (X + i))
row_allreduce('add', 4)
xrow_allreduce('add', 4, 5)
e('v_mul_f32 v4, 0x3a800000, v4')
e('v_sub_f32 v5, v%d, v4' % X)
e('v_mul_f32 v6, v5, v5')
for i in range(1, 16):
    e('v_sub_f32 v5, v%d, v4' % (X + i))
    e('v_fmac_f32 v6, v5, v5')
row_allreduce('add', 6)
xrow_allreduce('add', 6, 5)
e('v_mul_f32 v6, 0x3a800000, v6')
bf16_round(4, 4)
bf16_round(6, 6)
e('v_add_f32 v6, %s, v6' % f32(1e-5))
bf16_round(6, 6)
e('v_sqrt_f32 v6, v6')
e('s_nop 0')
bf16_round(6, 6)
e('v_rcp_f32 v7, v6')
e('s_nop 0')
for i in range(16):
    e('v_sub_f32 v5, v%d, v4' % (X + i))
    bf16_round(5, 5)
    e('v_mul_f32 v8, v5, v7')
    e('v_fma_f32 v9, -v8, v6, v5')
    e('v_fma_f32 v%d, v9, v7, v8' % (X + i))
for i in range(8):
    e('v_cvt_pk_bf16_f32 v%d, v%d, v%d' % (TMP + i, X + 2 * i, X + 2 * i + 1))
e('s_lshl_b32 s44, s44, 11')
e('v_lshlrev_b32 v4, 4, v1')
e('v_add_u32 v4, s44, v4')
e('ds_write_b128 v4, %s offset:%d' % (vr(TMP), XN))
e('ds_write_b128 v4, %s offset:%d' % (vr(TMP + 4), XN + 1024))
e('s_waitcnt lgkmcnt(0)')
lab('L_noln')
e('s_barrier')

e('v_and_b32 v4, 3, v3')
e('v_lshlrev_b32 v4, 11, v4')
e('v_lshl_add_u32 v4, v2, 4, v4')
e('s_lshl_b32 s44, s%d, 11' % S_WAVE)
e('v_lshlrev_b32 v6, 7, v3')
e('v_add_u32 v6, s44, v6')
e('s_cmp_ge_u32 s2, 128')
e('s_cbranch_scc1 L_noq')
e('s_lshl_b32 s44, s47, 1')
e('v_add_u32 v5, s44, v4')
e('ds_read_b128 %s, v5 offset:%d' % (vr(AF), XN))
e('s_waitcnt vmcnt(24) lgkmcnt(0)')
gemv_block(T1, AF, VV, False)
e('v_add_u32 v7, %d, v6' % P1)
write_part(VV, False, None, 7, '0xffff', 16)
lab('L_noq')
e('s_cmp_ge_u32 s2, 224')
e('s_cbranch_scc1 L_nogu')
e('s_lshl_b32 s44, s51, 1')
e('v_add_u32 v5, s44, v4')
e('ds_read_b128 %s, v5 offset:%d' % (vr(AF), XN))
e('s_waitcnt vmcnt(16) lgkmcnt(0)')
gemv_block(T2, AF, VV + 32, False)
e('v_add_u32 v7, %d, v6' % P2)
write_part(VV + 32, False, None, 7, '0xffff', 16)
lab('L_nogu')
e('s_waitcnt lgkmcnt(0)')

def phaseB_loads(ctrl):
    if ctrl:
        load_K(6)
        load_V(6)
        e('s_mov_b64 exec, 0')
        load_block(T2, S_WDB, 2048, 5)
        e('s_cmp_ge_u32 s2, 128')
        e('s_cselect_b64 exec, -1, 0')
        load_block(T1, S_T1, 2048, 4)
        e('s_mov_b64 exec, -1')
    else:
        e('s_cmp_lg_u32 s%d, 0' % S_WAVE)
        e('s_cselect_b64 exec, -1, 0')
        load_V(6)
        e('s_cmp_ge_u32 s%d, 4' % S_WAVE)
        e('s_cselect_b32 s44, 1, 0')
        e('s_cmp_lt_u32 s2, 224')
        e('s_cselect_b32 s45, 1, 0')
        e('s_and_b32 s44, s44, s45')
        e('s_cmp_lg_u32 s44, 0')
        e('s_cselect_b64 exec, -1, 0')
        load_block(T2, S_WDB, 2048, 5)
        e('s_cmp_lg_u32 s%d, 0' % S_WAVE)
        e('s_cselect_b32 s44, 1, 0')
        e('s_cmp_ge_u32 s2, 128')
        e('s_cselect_b32 s45, 1, 0')
        e('s_and_b32 s44, s44, s45')
        e('s_cmp_lg_u32 s44, 0')
        e('s_cselect_b64 exec, -1, 0')
        load_block(T1, S_T1, 2048, 4)
        e('s_mov_b64 exec, -1')

phaseB_loads(False)

e('s_cmp_lg_u32 s%d, 0' % S_WAVE)
e('s_cbranch_scc1 L_nononce2')
e('s_mov_b32 s%d, 0' % S_SPIN)
e('v_mov_b32 v5, 0')
lab('L_noncepoll')
e('global_load_dword v4, v5, %s sc1' % sr(S_DBG))
e('s_waitcnt vmcnt(0)')
e('v_readfirstlane_b32 s44, v4')
e('s_cmp_lg_u32 s44, 0')
e('s_cbranch_scc1 L_noncegot')
e('s_add_u32 s%d, s%d, 1' % (S_SPIN, S_SPIN))
e('s_cmp_ge_u32 s%d, %d' % (S_SPIN, SPIN_MAX))
e('s_cbranch_scc1 L_noncegot')
e('s_sleep 1')
e('s_branch L_noncepoll')
lab('L_noncegot')
e('v_mov_b32 v5, %d' % NONCE)
e('ds_write_b32 v5, v4')
e('s_waitcnt lgkmcnt(0)')
lab('L_nononce2')
e('s_barrier')
e('v_mov_b32 v5, %d' % NONCE)
e('ds_read_b32 v4, v5')
e('s_waitcnt lgkmcnt(0)')
e('v_readfirstlane_b32 s%d, v4' % S_TAG)

e('s_and_b32 s44, s%d, 3' % S_WAVE)
e('s_cmp_lt_u32 s%d, 4' % S_WAVE)
e('s_cbranch_scc0 L_pubgu')
e('s_cmp_ge_u32 s2, 128')
e('s_cbranch_scc1 L_pubdone')
e('s_mov_b32 s45, %d' % P1)
e('s_lshr_b32 s46, s2, 5')
e('s_lshl_b32 s46, s46, 2')
e('s_add_u32 s46, s46, s44')
e('s_lshl_b32 s46, s46, 15')
e('s_and_b32 s54, s2, 31')
e('s_lshl_b32 s54, s54, 10')
e('s_add_u32 s46, s46, s54')
e('s_add_u32 s46, s46, %d' % QP)
e('s_branch L_pubgo')
lab('L_pubgu')
e('s_cmp_ge_u32 s2, 224')
e('s_cbranch_scc1 L_pubdone')
e('s_mov_b32 s45, %d' % P2)
e('s_lshl_b32 s46, s48, 2')
e('s_add_u32 s46, s46, s49')
e('s_lshl_b32 s46, s46, 2')
e('s_add_u32 s46, s46, s44')
e('s_mul_i32 s46, s46, 28672')
e('s_lshl_b32 s54, s50, 10')
e('s_add_u32 s46, s46, s54')
e('s_add_u32 s46, s46, %d' % GP)
lab('L_pubgo')
e('s_lshl_b32 s44, s44, 2')
e('s_add_u32 s45, s45, s44')
e('v_lshlrev_b32 v4, 5, v1')
e('v_add_u32 v4, s45, v4')
for v in range(8):
    e('ds_read_b32 v%d, v4 offset:%d' % (TMP + 2 * v, v * 2048))
    e('ds_read_b32 v%d, v4 offset:%d' % (TMP + 2 * v + 1, v * 2048 + 16))
e('s_waitcnt lgkmcnt(0)')
e('v_add_f32 v8, v%d, v%d' % (TMP, TMP + 2))
e('v_add_f32 v10, v%d, v%d' % (TMP + 1, TMP + 3))
for v in range(2, 8):
    e('v_add_f32 v8, v8, v%d' % (TMP + 2 * v))
    e('v_add_f32 v10, v10, v%d' % (TMP + 2 * v + 1))
e('v_mov_b32 v9, s%d' % S_TAG)
e('v_mov_b32 v11, s%d' % S_TAG)
e('v_lshlrev_b32 v5, 4, v1')
e('v_add_u32 v5, s46, v5')
e('global_store_dwordx4 v5, v[8:11], %s sc1' % sr(S_WS))
lab('L_pubdone')

e('s_cmp_lg_u32 s%d, 0' % S_WAVE)
e('s_cbranch_scc1 L_nogather')
e('s_lshr_b32 s44, s2, 4')
e('s_lshl_b32 s44, s44, 13')
e('s_add_u32 s44, s44, %d' % QP)
e('v_lshlrev_b32 v4, 17, v2')
e('v_lshlrev_b32 v5, 9, v3')
e('v_add3_u32 v4, v4, v5, s44')
def _pp():
    e('global_load_dwordx2 v[8:9], v4, %s sc1' % sr(S_WS))
spin_loop(_pp, [9], 10, 11)
e('v_lshlrev_b32 v4, 4, v1')
e('v_add_u32 v4, s44, v4')
e('v_add_u32 v4, 0x1000, v4')
for rnd in range(2):
    def _q():
        for k2 in range(2):
            e('v_add_u32 v5, %d, v4' % ((2 * rnd + k2) * 131072))
            for h in range(8):
                e('global_load_dwordx4 %s, v5, %s offset:%d sc1' % (vr(VV + 32 * k2 + 4 * h), sr(S_WS), h * 1024 - 4096))
    spin_loop(_q, [VV + 4 * i + 1 for i in range(16)] + [VV + 4 * i + 3 for i in range(16)], 10, 11)
    for h in range(8):
        for p in range(2):
            d = TMP + 2 * h + p
            if rnd == 0:
                e('v_add_f32 v%d, v%d, v%d' % (d, VV + 4 * h + 2 * p, VV + 32 + 4 * h + 2 * p))
            else:
                e('v_add_f32 v%d, v%d, v%d' % (d, d, VV + 4 * h + 2 * p))
                e('v_add_f32 v%d, v%d, v%d' % (d, d, VV + 32 + 4 * h + 2 * p))
e('v_lshlrev_b32 v5, 2, v1')
for h in range(8):
    e('v_cvt_pk_bf16_f32 v6, v%d, v%d' % (TMP + 2 * h, TMP + 2 * h + 1))
    e('ds_write_b32 v5, v6 offset:%d' % (QL + 256 * h))
e('s_cmp_ge_u32 s2, 224')
e('s_cbranch_scc1 L_nohg')
e('s_lshr_b32 s44, s2, 2')
e('s_lshl_b32 s44, s44, 9')
e('s_add_u32 s44, s44, %d' % GP)
e('v_lshrrev_b32 v4, 5, v1')
e('v_mul_u32_u24 v4, %d, v4' % (16 * 28672))
e('v_and_b32 v5, 31, v1')
e('v_lshlrev_b32 v5, 4, v5')
e('v_add3_u32 v4, v4, v5, s44')
def _h():
    e('v_mov_b32 v5, v4')
    for i in range(16):
        e('global_load_dwordx4 %s, v5, %s sc1' % (vr(VV + 4 * i), sr(S_WS)))
        if i < 15:
            e('v_add_u32 v5, 28672, v5')
spin_loop(_h, [VV + 4 * i + 1 for i in range(16)] + [VV + 4 * i + 3 for i in range(16)], 10, 11)
for b in range(4):
    for p in range(2):
        d = TMP + 2 * b + p
        e('v_add_f32 v%d, v%d, v%d' % (d, VV + 4 * b + 2 * p, VV + 4 * (4 + b) + 2 * p))
        e('v_add_f32 v%d, v%d, v%d' % (d, d, VV + 4 * (8 + b) + 2 * p))
        e('v_add_f32 v%d, v%d, v%d' % (d, d, VV + 4 * (12 + b) + 2 * p))
        bf16_round(d, d)
        e('v_mov_b32 v%d, v%d' % (d + 8, d))
e('s_nop 1')
for i in range(8):
    e('v_permlane32_swap_b32 v%d, v%d' % (TMP + i, TMP + 8 + i))
e('s_nop 1')
for i in range(8):
    g_ = TMP + i; u_ = TMP + 8 + i
    e('v_mul_f32 v4, v%d, v%d' % (g_, g_))
    e('v_mul_f32 v4, v4, v%d' % g_)
    e('v_mov_b32 v5, %s' % f32(0.044715))
    e('v_fma_f32 v4, v4, v5, v%d' % g_)
    e('v_mul_f32 v4, %s, v4' % f32(-2.0 * 0.7978845608028654 * 1.4426950408889634))
    sigmoid_mul(6, g_, 4, 5)
    bf16_round(6, 6)
    e('v_mul_f32 v%d, v6, v%d' % (g_, u_))
e('v_and_b32 v5, 31, v1')
e('v_lshlrev_b32 v5, 2, v5')
for b in range(4):
    e('v_cvt_pk_bf16_f32 v6, v%d, v%d' % (TMP + 2 * b, TMP + 2 * b + 1))
    e('ds_write_b32 v5, v6 offset:%d' % (HL + 128 * b))
lab('L_nohg')
e('s_waitcnt lgkmcnt(0)')
phaseB_loads(True)
lab('L_nogather')
e('s_barrier')

QF = TMP
SV = TMP + 16
e('v_and_b32 v4, 7, v3')
e('v_lshlrev_b32 v4, 8, v4')
e('v_lshl_add_u32 v4, v2, 4, v4')
for t in range(4):
    e('ds_read_b128 %s, v4 offset:%d' % (vr(QF + 4 * t), QL + 64 * t))
e('s_waitcnt vmcnt(32) lgkmcnt(0)')
for T in range(4):
    for t in range(4):
        e('v_mfma_f32_16x16x32_bf16 %s, %s, %s, %s' % (vr(SV + 4 * T), ar(16 * T + 4 * t), vr(QF + 4 * t), '0' if t == 0 else vr(SV + 4 * T)))
e('s_nop 7')
e('s_mov_b32 s44, %s' % f32(128 ** -0.5))
for i in range(0, 16, 2):
    e('v_cvt_pk_bf16_f32 v4, v%d, v%d' % (SV + i, SV + i + 1))
    e('v_lshlrev_b32 v5, 16, v4')
    e('v_and_b32 v6, 0xffff0000, v4')
    e('v_mul_f32 v5, s44, v5')
    e('v_mul_f32 v6, s44, v6')
    e('v_cvt_pk_bf16_f32 v4, v5, v6')
    e('v_lshlrev_b32 v%d, 16, v4' % (SV + i))
    e('v_and_b32 v%d, 0xffff0000, v4' % (SV + i + 1))
e('v_max_f32 v8, v%d, v%d' % (SV, SV + 1))
for i in range(2, 16):
    e('v_max_f32 v8, v8, v%d' % (SV + i))
xrow_allreduce('max', 8, 5)
e('s_mov_b32 s44, 0x%x' % LOG2E)
e('v_mul_f32 v5, s44, v8')
for i in range(16):
    e('v_fma_f32 v%d, v%d, s44, -v5' % (SV + i, SV + i))
    e('v_exp_f32 v%d, v%d' % (SV + i, SV + i))
e('s_nop 0')
e('v_add_f32 v9, v%d, v%d' % (SV, SV + 1))
for i in range(2, 16):
    e('v_add_f32 v9, v9, v%d' % (SV + i))
xrow_allreduce('add', 9, 5)
for i in range(8):
    e('v_cvt_pk_bf16_f32 v%d, v%d, v%d' % (PREG + i, SV + 2 * i, SV + 2 * i + 1))
e('s_lshl_b32 s44, s%d, 6' % S_WAVE)
e('v_lshlrev_b32 v4, 3, v1')
e('v_add_u32 v4, s44, v4')
e('s_mov_b64 exec, 0xff')
e('ds_write_b64 v4, v[8:9] offset:%d' % MLL)
e('s_mov_b64 exec, -1')
e('s_waitcnt vmcnt(24)')
gemv_block(VV, PREG, 0, True, first=True)
e('s_waitcnt vmcnt(16)')
gemv_block(VV + 32, PREG + 4, 0, True, first=False)
e('s_lshl_b32 s44, s%d, 12' % S_WAVE)
e('v_lshlrev_b32 v7, 8, v3')
e('v_lshl_add_u32 v7, v2, 4, v7')
e('v_add_u32 v7, s44, v7')
e('v_add_u32 v7, %d, v7' % OV)
write_part(0, True, None, 7, '0xffffffff', 32)
e('s_waitcnt lgkmcnt(0)')
e('s_barrier')

e('s_lshl_b32 s44, s%d, 3' % S_WAVE)
e('v_mov_b32 v4, s44')
for v in range(8):
    e('ds_read_b64 %s, v4 offset:%d' % (vr(TMP + 2 * v, 2), MLL + 64 * v))
e('s_lshl_b32 s44, s%d, 2' % S_WAVE)
e('v_lshlrev_b32 v5, 6, v1')
e('v_add_u32 v5, s44, v5')
for v in range(8):
    e('ds_read_b32 v%d, v5 offset:%d' % (VV + 2 * v, OV + 4096 * v))
    e('ds_read_b32 v%d, v5 offset:%d' % (VV + 2 * v + 1, OV + 4096 * v + 32))
e('s_waitcnt lgkmcnt(0)')
e('v_max_f32 v8, v%d, v%d' % (TMP, TMP + 2))
for v in range(2, 8):
    e('v_max_f32 v8, v8, v%d' % (TMP + 2 * v))
e('s_mov_b32 s44, 0x%x' % LOG2E)
for v in range(8):
    e('v_sub_f32 v%d, v%d, v8' % (TMP + 2 * v, TMP + 2 * v))
    e('v_mul_f32 v%d, s44, v%d' % (TMP + 2 * v, TMP + 2 * v))
    e('v_exp_f32 v%d, v%d' % (TMP + 2 * v, TMP + 2 * v))
e('s_nop 0')
e('v_mul_f32 v10, v%d, v%d' % (TMP, TMP + 1))
e('v_mul_f32 v4, v%d, v%d' % (TMP, VV))
e('v_mul_f32 v6, v%d, v%d' % (TMP, VV + 1))
for v in range(1, 8):
    e('v_fmac_f32 v10, v%d, v%d' % (TMP + 2 * v, TMP + 2 * v + 1))
    e('v_fmac_f32 v4, v%d, v%d' % (TMP + 2 * v, VV + 2 * v))
    e('v_fmac_f32 v6, v%d, v%d' % (TMP + 2 * v, VV + 2 * v + 1))
e('v_mov_b32 v5, s%d' % S_TAG)
e('v_mov_b32 v7, s%d' % S_TAG)
e('v_mov_b32 v9, s%d' % S_TAG)
e('v_mov_b32 v11, s%d' % S_TAG)
e('s_lshl_b32 s44, s2, 3')
e('s_add_u32 s44, s44, s%d' % S_WAVE)
e('s_lshl_b32 s44, s44, 10')
e('s_add_u32 s44, s44, %d' % OP)
e('v_lshlrev_b32 v%d, 4, v1' % TMP)
e('v_add_u32 v%d, s44, v%d' % (TMP, TMP))
e('global_store_dwordx4 v%d, v[4:7], %s sc1' % (TMP, sr(S_WS)))
e('s_lshr_b32 s44, s2, 4')
e('s_lshl_b32 s44, s44, 3')
e('s_add_u32 s44, s44, s%d' % S_WAVE)
e('s_lshl_b32 s44, s44, 4')
e('s_and_b32 s45, s2, 15')
e('s_add_u32 s44, s44, s45')
e('s_lshl_b32 s44, s44, 4')
e('s_add_u32 s44, s44, %d' % ML)
e('v_mov_b32 v%d, s44' % (TMP + 1))
e('s_mov_b64 exec, 1')
e('global_store_dwordx4 v%d, v[8:11], %s sc1' % (TMP + 1, sr(S_WS)))
e('s_mov_b64 exec, -1')

e('s_cmp_lt_u32 s%d, 4' % S_WAVE)
e('s_cbranch_scc1 L_nodown')
e('s_cmp_ge_u32 s2, 224')
e('s_cbranch_scc1 L_nodown')
e('s_lshr_b32 s44, s%d, 1' % S_WAVE)
e('s_and_b32 s44, s44, 1')
e('s_lshl_b32 s44, s44, 6')
e('v_and_b32 v4, 3, v3')
e('v_lshlrev_b32 v4, 7, v4')
e('v_lshl_add_u32 v4, v2, 4, v4')
e('v_add_u32 v4, s44, v4')
e('ds_read_b128 %s, v4 offset:%d' % (vr(AF), HL))
e('s_waitcnt vmcnt(10) lgkmcnt(0)')
gemv_block(T2, AF, 32, True)
e('s_sub_u32 s44, s%d, 4' % S_WAVE)
e('s_lshl_b32 s44, s44, 11')
e('s_add_u32 s44, s44, %d' % P3)
e('v_lshlrev_b32 v7, 7, v3')
e('v_add_u32 v7, s44, v7')
write_part(32, True, None, 7, '0xffff', 16)
lab('L_nodown')

e('s_cmp_lt_u32 s2, 128')
e('s_cbranch_scc1 L_nowog')
e('s_sub_u32 s44, s2, 128')
e('s_lshr_b32 s45, s44, 2')
e('s_lshr_b32 s46, s45, 3')
e('s_and_b32 s54, s45, 7')
e('s_lshr_b32 s55, s44, 1')
e('s_and_b32 s55, s55, 1')
e('s_lshl_b32 s56, s46, 17')
e('s_lshl_b32 s57, s54, 10')
e('s_add_u32 s56, s56, s57')
e('s_lshl_b32 s57, s55, 9')
e('s_add_u32 s56, s56, s57')
e('s_lshl_b32 s57, s%d, 6' % S_WAVE)
e('s_add_u32 s56, s56, s57')
e('s_add_u32 s56, s56, %d' % OP)
e('v_lshlrev_b32 v4, 19, v2')
e('v_lshlrev_b32 v5, 13, v3')
e('v_add3_u32 v4, v4, v5, s56')
e('s_lshl_b32 s56, s46, 11')
e('s_lshl_b32 s57, s54, 8')
e('s_add_u32 s56, s56, s57')
e('s_add_u32 s56, s56, %d' % ML)
e('v_lshlrev_b32 v5, 13, v2')
e('v_lshlrev_b32 v6, 4, v3')
e('v_add3_u32 v5, v5, v6, s56')
def _o():
    e('global_load_dwordx4 %s, v5, %s sc1' % (vr(VV + 16), sr(S_WS)))
    for i in range(4):
        e('global_load_dwordx4 %s, v4, %s offset:%d sc1' % (vr(VV + 4 * i), sr(S_WS), 16 * i))
spin_loop(_o, [VV + 4 * i + 1 for i in range(5)] + [VV + 4 * i + 3 for i in range(5)], 10, 11, sleep=1)
e('v_mov_b32 v8, v%d' % (VV + 16))
row_allreduce('max', 8)
e('s_mov_b32 s44, 0x%x' % LOG2E)
e('v_sub_f32 v8, v%d, v8' % (VV + 16))
e('v_mul_f32 v8, s44, v8')
e('v_exp_f32 v8, v8')
e('s_nop 0')
e('v_mul_f32 v9, v8, v%d' % (VV + 18))
row_allreduce('add', 9)
e('v_rcp_f32 v10, v9')
e('s_nop 0')
e('v_fma_f32 v11, -v9, v10, 1.0')
e('v_fma_f32 v10, v11, v10, v10')
e('v_mul_f32 v8, v8, v10')
for i in range(8):
    e('v_mul_f32 v%d, v8, v%d' % (TMP + i, VV + 2 * i))
for sh in (8, 4, 2, 1):
    e('s_nop 1')
    for i in range(8):
        e('v_add_f32_dpp v%d, v%d, v%d row_ror:%d row_mask:0xf bank_mask:0xf' % (TMP + i, TMP + i, TMP + i, sh))
for i in range(4):
    e('v_cvt_pk_bf16_f32 v%d, v%d, v%d' % (TMP + 8 + i, TMP + 2 * i, TMP + 2 * i + 1))
e('s_lshl_b32 s44, s%d, 4' % S_WAVE)
e('v_lshlrev_b32 v4, 7, v2')
e('v_add_u32 v4, s44, v4')
e('s_mov_b32 exec_lo, 0x00010001')
e('s_mov_b32 exec_hi, 0x00010001')
e('ds_write_b128 v4, %s offset:%d' % (vr(TMP + 8), OL))
e('s_mov_b64 exec, -1')
lab('L_nowog')
e('s_waitcnt lgkmcnt(0)')
e('s_barrier')

e('s_cmp_ge_u32 s2, 224')
e('s_cbranch_scc1 L_nodpub')
e('v_lshrrev_b32 v4, 7, v0')
e('v_and_b32 v5, 127, v0')
e('v_lshrrev_b32 v6, 6, v5')
e('v_and_b32 v7, 63, v5')
e('v_lshlrev_b32 v7, 5, v7')
e('v_lshl_add_u32 v7, v6, 11, v7')
e('v_lshl_add_u32 v7, v4, 2, v7')
e('ds_read_b32 v8, v7 offset:%d' % P3)
e('ds_read_b32 v10, v7 offset:%d' % (P3 + 16))
e('ds_read_b32 v9, v7 offset:%d' % (P3 + 4096))
e('ds_read_b32 v11, v7 offset:%d' % (P3 + 4096 + 16))
e('s_lshr_b32 s44, s2, 2')
e('s_lshl_b32 s44, s44, 15')
e('s_and_b32 s45, s2, 3')
e('s_lshl_b32 s45, s45, 11')
e('s_add_u32 s44, s44, s45')
e('s_add_u32 s44, s44, %d' % DP)
e('v_lshlrev_b32 v4, 13, v4')
e('v_lshl_add_u32 v4, v5, 4, v4')
e('v_add_u32 v4, s44, v4')
e('s_waitcnt lgkmcnt(0)')
e('v_add_f32 v8, v8, v9')
e('v_add_f32 v10, v10, v11')
e('v_mov_b32 v9, s%d' % S_TAG)
e('v_mov_b32 v11, s%d' % S_TAG)
e('global_store_dwordx4 v4, v[8:11], %s sc1' % sr(S_WS))
lab('L_nodpub')

e('s_cmp_lt_u32 s2, 128')
e('s_cbranch_scc1 L_final')
e('s_lshr_b32 s44, s%d, 2' % S_WAVE)
e('s_lshl_b32 s44, s44, 6')
e('v_and_b32 v4, 3, v3')
e('v_lshlrev_b32 v4, 7, v4')
e('v_lshl_add_u32 v4, v2, 4, v4')
e('v_add_u32 v4, s44, v4')
e('ds_read_b128 %s, v4 offset:%d' % (vr(AF), OL))
e('s_waitcnt lgkmcnt(0)')
gemv_block(T1, AF, 0, True)
e('s_lshl_b32 s44, s%d, 11' % S_WAVE)
e('s_add_u32 s44, s44, %d' % P4)
e('v_lshlrev_b32 v7, 7, v3')
e('v_add_u32 v7, s44, v7')
write_part(0, True, None, 7, '0xffff', 16)
e('s_waitcnt lgkmcnt(0)')
e('s_barrier')
e('v_lshrrev_b32 v4, 7, v0')
e('v_and_b32 v5, 127, v0')
e('v_lshrrev_b32 v6, 5, v5')
e('v_and_b32 v7, 31, v5')
e('v_lshlrev_b32 v7, 6, v7')
e('v_lshl_add_u32 v7, v6, 11, v7')
e('v_lshl_add_u32 v7, v4, 2, v7')
for i in range(4):
    e('ds_read_b32 v%d, v7 offset:%d' % (TMP + i, P4 + 16 * i))
    e('ds_read_b32 v%d, v7 offset:%d' % (TMP + 4 + i, P4 + 8192 + 16 * i))
e('s_sub_u32 s44, s2, 128')
e('s_lshr_b32 s45, s44, 1')
e('s_lshl_b32 s45, s45, 15')
e('s_and_b32 s44, s44, 1')
e('s_lshl_b32 s44, s44, 12')
e('s_add_u32 s44, s44, s45')
e('s_add_u32 s44, s44, %d' % SP)
e('v_lshlrev_b32 v4, 13, v4')
e('v_lshl_add_u32 v4, v5, 5, v4')
e('v_add_u32 v4, s44, v4')
e('s_waitcnt lgkmcnt(0)')
e('v_add_f32 v8, v%d, v%d' % (TMP, TMP + 4))
e('v_add_f32 v10, v%d, v%d' % (TMP + 1, TMP + 5))
e('v_add_f32 v12, v%d, v%d' % (TMP + 2, TMP + 6))
e('v_add_f32 v14, v%d, v%d' % (TMP + 3, TMP + 7))
for rg in (9, 11, 13, 15):
    e('v_mov_b32 v%d, s%d' % (rg, S_TAG))
e('global_store_dwordx4 v4, v[8:11], %s sc1' % sr(S_WS))
e('global_store_dwordx4 v4, v[12:15], %s offset:16 sc1' % sr(S_WS))

lab('L_final')
e('s_cmp_lg_u32 s%d, 0' % S_WAVE)
e('s_cbranch_scc1 L_end')
e('s_lshr_b32 s44, s2, 6')
e('s_lshl_b32 s44, s44, 13')
e('s_and_b32 s45, s2, 63')
e('s_lshl_b32 s45, s45, 7')
e('s_add_u32 s44, s44, s45')
e('v_lshrrev_b32 v4, 3, v1')
e('v_lshlrev_b32 v4, 15, v4')
e('v_and_b32 v5, 7, v1')
e('v_lshlrev_b32 v5, 4, v5')
e('v_add3_u32 v4, v4, v5, s44')
e('s_lshl_b32 s45, s2, 5')
e('v_lshrrev_b32 v6, 2, v5')
e('v_add_u32 v6, s45, v6')
e('global_load_dword v7, v6, %s' % sr(S_X))
def _f0():
    e('v_add_u32 v5, %d, v4' % (SP + 7 * 262144))
    e('global_load_dwordx4 %s, v5, %s sc1' % (vr(VV), sr(S_WS)))
spin_loop(_f0, [VV + 1, VV + 3], 10, 11, sleep=1)
def _f():
    for i in range(8):
        e('v_add_u32 v5, %d, v4' % (SP + i * 262144))
        e('global_load_dwordx4 %s, v5, %s sc1' % (vr(VV + 4 * i), sr(S_WS)))
    for i in range(7):
        e('v_add_u32 v5, %d, v4' % (DP + i * 262144))
        e('global_load_dwordx4 %s, v5, %s sc1' % (vr(VV + 32 + 4 * i), sr(S_WS)))
spin_loop(_f, [VV + 4 * i + 1 for i in range(15)] + [VV + 4 * i + 3 for i in range(15)], 10, 11, sleep=1)
e('v_add_f32 v8, v%d, v%d' % (VV, VV + 4))
e('v_add_f32 v9, v%d, v%d' % (VV + 2, VV + 6))
for i in range(2, 8):
    e('v_add_f32 v8, v8, v%d' % (VV + 4 * i))
    e('v_add_f32 v9, v9, v%d' % (VV + 4 * i + 2))
e('v_add_f32 v10, v%d, v%d' % (VV + 32, VV + 36))
e('v_add_f32 v11, v%d, v%d' % (VV + 34, VV + 38))
for i in range(2, 7):
    e('v_add_f32 v10, v10, v%d' % (VV + 32 + 4 * i))
    e('v_add_f32 v11, v11, v%d' % (VV + 32 + 4 * i + 2))
e('s_nop 1')
for rg in (8, 9, 10, 11):
    e('v_add_f32_dpp v%d, v%d, v%d row_ror:8 row_mask:0xf bank_mask:0xf' % (rg, rg, rg))
for rg in (8, 9, 10, 11):
    xrow_allreduce('add', rg, 5)
e('s_mov_b32 s44, 0x%x' % (LOG2E | 0x80000000))
e('v_lshlrev_b32 v12, 16, v7')
e('v_and_b32 v13, 0xffff0000, v7')
for k in range(2):
    s_ = 8 + k; d_ = 10 + k; x_ = 12 + k
    bf16_round(s_, s_)
    bf16_round(d_, d_)
    e('v_mul_f32 v4, s44, v%d' % d_)
    sigmoid_mul(5, d_, 4, 14)
    bf16_round(5, 5)
    e('v_mul_f32 v5, v%d, v5' % s_)
    bf16_round(5, 5)
    e('v_add_f32 v%d, v%d, v5' % (x_, x_))
e('v_cvt_pk_bf16_f32 v12, v12, v13')
e('s_mov_b64 exec, 0xff')
e('global_store_dword v6, v12, %s' % sr(S_OUT))
lab('L_end')
e('s_endpgm')

hdr = open('cdna_kernels/%s.s.ref' % NAME).read().split('; Override')[0]
src = hdr
src += '; @launch grid=(256,1,1) block=(512,1,1) lds=%d\n' % LDS_BYTES
src += '.amdgcn_target "amdgcn-amd-amdhsa--gfx950"\n.text\n'
src += '.globl %s_kernel\n.p2align 8\n.type %s_kernel,@function\n%s_kernel:\n' % (NAME, NAME, NAME)
src += '\n'.join(L) + '\n'
src += '''.section .rodata,"a"
.p2align 6
.amdhsa_kernel %s_kernel
  .amdhsa_next_free_vgpr 248
  .amdhsa_next_free_sgpr 72
  .amdhsa_accum_offset %d
  .amdhsa_group_segment_fixed_size 0
  .amdhsa_kernarg_size 96
  .amdhsa_user_sgpr_count 2
  .amdhsa_user_sgpr_kernarg_segment_ptr 1
  .amdhsa_system_sgpr_workgroup_id_x 1
.end_amdhsa_kernel
''' % (NAME, NV)
open(OUT, 'w').write(src)
print('wrote', OUT, len(L), 'lines')
```

```python
import sys, struct
def f32(x):
    return '0x%08x' % struct.unpack('<I', struct.pack('<f', x))[0]

NAME = 'recurrent_scan__gqa_block_cached__glu_gated_geglu__decode'
OUT = 'cdna_kernels/%s.s' % NAME

OPT = dict(nt=0, stamps=0, nke=4, pref=1, thr=0, thrg=0)
for a in sys.argv[1:]:
    if '=' in a:
        k, v = a.split('=')
        if k == 'out':
            OUT = v
        else:
            OPT[k] = int(v)

L = []
def e(s):
    L.append('    ' + s)
def lab(s):
    L.append(s + ':')
def cmt(s):
    L.append('    ; ' + s)
_uid = [0]
def uid(p):
    _uid[0] += 1
    return '%s_%d' % (p, _uid[0])

QP = 0x000000
GP = 0x080000
OP = 0x200000
ML = 0x400000
SP = 0x500000
DP = 0x700000
STAMPS = 0x1000000

XN = 0
NONCE = 8192
QL = 8448
QLS = 272
HL = 10752
OL = 11264
MLL = 11776
P1 = 12288
P2 = 28672
P3 = 45056
P4 = 53248
OV = 69632
LDS_BYTES = 102400

T1 = 24
T2 = 56
VV = 88
TMP = 152
NV = 184
PREG = 12
AF = 20
S_X, S_K, S_V, S_WQ, S_WO, S_WG, S_WU, S_WD, S_OUT, S_DBG, S_WS = 4, 6, 8, 10, 12, 16, 18, 20, 22, 24, 26
S_WAVE, S_TAG, S_SEL0, S_SEL1 = 28, 29, 30, 31
S_T1, S_T2, S_KB, S_VB, S_WDB = 32, 34, 36, 38, 40
S_RS1 = 42
S_SPIN = 62
LOG2E = 0x3fb8aa3b
SPIN_MAX = 200000
NKE = OPT['nke']

NT = ' nt' if OPT['nt'] else ''

def stamp(i):
    if OPT['stamps']:
        e('s_memrealtime s[%d:%d]' % (64 + 2 * i, 65 + 2 * i))

def vr(b, n=4):
    return 'v[%d:%d]' % (b, b + n - 1)
def ar(b, n=4):
    return 'a[%d:%d]' % (b, b + n - 1)
def sr(b, n=2):
    return 's[%d:%d]' % (b, b + n - 1)

def add64(dst, base, off_sreg):
    e('s_add_u32 s%d, s%d, s%d' % (dst, base, off_sreg))
    e('s_addc_u32 s%d, s%d, 0' % (dst + 1, base + 1))

THR = [0]
def thr():
    if THR[0]:
        e('s_waitcnt vmcnt(%d)' % (THR[0] - 1))

def load_block(dst, sbase, rs, vtmp):
    if isinstance(rs, int):
        e('v_mul_u32_u24 v%d, %d, v2' % (vtmp, 8 * rs))
    else:
        e('s_lshl_b32 s59, %s, 3' % rs)
        e('v_mul_u32_u24 v%d, s59, v2' % vtmp)
    e('v_lshl_add_u32 v%d, v3, 4, v%d' % (vtmp, vtmp))
    for i in range(8):
        thr()
        e('global_load_dwordx4 %s, v%d, %s%s' % (vr(dst + 4 * i), vtmp, sr(sbase), NT))
        if i < 7:
            e('v_add_u32 v%d, %s, v%d' % (vtmp, str(rs), vtmp))

def load_K(vtmp, lo, hi):
    if lo >= hi:
        return
    e('v_lshlrev_b32 v%d, 8, v3' % vtmp)
    e('v_lshl_add_u32 v%d, v2, 4, v%d' % (vtmp, vtmp))
    cur = 0
    for n in range(lo, hi):
        T, t = n >> 2, n & 3
        if T * 4096 != cur:
            e('v_add_u32 v%d, %d, v%d' % (vtmp, T * 4096 - cur, vtmp))
            cur = T * 4096
        thr()
        e('global_load_dwordx4 %s, v%d, %s offset:%d%s' % (ar(16 * T + 4 * t), vtmp, sr(S_KB), t * 64, NT))

def load_V(vtmp):
    e('v_lshlrev_b32 v%d, 10, v2' % vtmp)
    e('v_lshl_add_u32 v%d, v3, 4, v%d' % (vtmp, vtmp))
    e('v_add_u32 v%d, 0x1000, v%d' % (vtmp, vtmp))
    for B in range(2):
        for j in range(8):
            off = (j >> 2) * 4096 - 4096 + (j & 3) * 256
            thr()
            e('global_load_dwordx4 %s, v%d, %s offset:%d%s' % (vr(VV + 32 * B + 4 * j), vtmp, sr(S_VB), off, NT))
        if B == 0:
            e('v_add_u32 v%d, 0x2000, v%d' % (vtmp, vtmp))

def transpose_block(T):
    for c in range(8):
        d = c >> 1
        sel = S_SEL0 if c % 2 == 0 else S_SEL1
        for jj in range(4):
            e('v_perm_b32 v%d, v%d, v%d, s%d' % (TMP + 4 * c + jj, T + 4 * (2 * jj + 1) + d, T + 4 * (2 * jj) + d, sel))

def gemv_block(T, A, acc, agpr, first=True):
    transpose_block(T)
    e('s_nop 1')
    f = ar if agpr else vr
    for c in range(8):
        e('v_mfma_f32_16x16x32_bf16 %s, %s, %s, %s' % (f(acc + 4 * c), vr(A), vr(TMP + 4 * c), '0' if first else f(acc + 4 * c)))

def write_part(acc, agpr, vaddr, nlanes_mask, cstride=None):
    e('s_nop 7')
    for i in range(4):
        for c in range(8):
            if agpr:
                e('v_accvgpr_read_b32 v%d, a%d' % (TMP + 8 * i + c, acc + 4 * c + i))
            else:
                e('v_mov_b32 v%d, v%d' % (TMP + 8 * i + c, acc + 4 * c + i))
    e('s_mov_b32 exec_lo, %s' % nlanes_mask)
    e('s_mov_b32 exec_hi, 0')
    for i in range(4):
        e('ds_write_b128 v%d, %s offset:%d' % (vaddr, vr(TMP + 8 * i), i * 512))
        e('ds_write_b128 v%d, %s offset:%d' % (vaddr, vr(TMP + 8 * i + 4), i * 512 + 16))
    e('s_mov_b64 exec, -1')

def bf16_round(dst, src):
    e('v_cvt_pk_bf16_f32 v%d, v%d, v%d' % (dst, src, src))
    e('v_and_b32 v%d, 0xffff0000, v%d' % (dst, dst))

def row_allreduce(op, v):
    for sh in (8, 4, 2, 1):
        e('s_nop 1')
        e('v_%s_f32_dpp v%d, v%d, v%d row_ror:%d row_mask:0xf bank_mask:0xf' % (op, v, v, v, sh))

def xrow_allreduce(op, v, t):
    e('v_mov_b32 v%d, v%d' % (t, v))
    e('s_nop 1')
    e('v_permlane16_swap_b32 v%d, v%d' % (v, t))
    e('s_nop 1')
    e('v_%s_f32 v%d, v%d, v%d' % (op, v, v, t))
    e('v_mov_b32 v%d, v%d' % (t, v))
    e('s_nop 1')
    e('v_permlane32_swap_b32 v%d, v%d' % (v, t))
    e('s_nop 1')
    e('v_%s_f32 v%d, v%d, v%d' % (op, v, v, t))

def check_tags(regs, vbad, vt):
    regs = list(regs)
    e('v_xor_b32 v%d, s%d, v%d' % (vbad, S_TAG, regs[0]))
    i = 1
    while i < len(regs):
        e('v_xor_b32 v%d, s%d, v%d' % (vt, S_TAG, regs[i]))
        e('v_or_b32 v%d, v%d, v%d' % (vbad, vbad, vt))
        i += 1
    e('v_cmp_ne_u32 vcc, 0, v%d' % vbad)

def spin_loop(body_issue, tagregs, vbad, vt, sleep=2):
    top = uid('L_spin'); done = uid('L_spun')
    e('s_mov_b32 s%d, 0' % S_SPIN)
    lab(top)
    body_issue()
    e('s_waitcnt vmcnt(0)')
    check_tags(tagregs, vbad, vt)
    e('s_nop 1')
    e('s_cbranch_vccz %s' % done)
    e('s_add_u32 s%d, s%d, 1' % (S_SPIN, S_SPIN))
    e('s_cmp_ge_u32 s%d, %d' % (S_SPIN, SPIN_MAX))
    e('s_cbranch_scc1 %s' % done)
    e('s_sleep %d' % sleep)
    e('s_branch %s' % top)
    lab(done)

def lds_flag_wait(off):
    top = uid('L_fl'); done = uid('L_fld')
    e('s_mov_b32 s%d, 0' % S_SPIN)
    e('v_mov_b32 v4, %d' % off)
    lab(top)
    e('ds_read_b32 v5, v4')
    e('s_waitcnt lgkmcnt(0)')
    e('v_readfirstlane_b32 s44, v5')
    e('s_cmp_lg_u32 s44, 0')
    e('s_cbranch_scc1 %s' % done)
    e('s_add_u32 s%d, s%d, 1' % (S_SPIN, S_SPIN))
    e('s_cmp_ge_u32 s%d, %d' % (S_SPIN, SPIN_MAX * 20))
    e('s_cbranch_scc1 %s' % done)
    e('s_sleep 1')
    e('s_branch %s' % top)
    lab(done)

def lds_flag_set(off):
    e('s_waitcnt lgkmcnt(0)')
    e('v_mov_b32 v4, %d' % off)
    e('v_mov_b32 v5, 1')
    e('ds_write_b32 v4, v5')

def sigmoid_mul(dst, x, arg, t):
    e('v_exp_f32 v%d, v%d' % (t, arg))
    e('s_nop 0')
    e('v_add_f32 v%d, 1.0, v%d' % (t, t))
    e('v_rcp_f32 v%d, v%d' % (t, t))
    e('s_nop 0')
    e('v_mul_f32 v%d, v%d, v%d' % (dst, x, t))

def red_lane_map(s_rhi_cp, vlds, vglb):
    e('v_and_b32 v10, 3, v1')
    e('v_bfe_u32 v11, v1, 2, 3')
    e('s_and_b32 s45, %s, 1' % s_rhi_cp)
    e('s_lshl_b32 s45, s45, 3')
    e('v_add_u32 v11, s45, v11')
    e('v_lshrrev_b32 v9, 5, v1')
    e('s_and_b32 s45, %s, 2' % s_rhi_cp)
    e('v_add_u32 v9, s45, v9')
    e('v_lshlrev_b32 v%d, 4, v11' % vlds)
    e('v_lshl_add_u32 v%d, v10, 2, v%d' % (vlds, vlds))
    e('v_lshl_add_u32 v%d, v9, 9, v%d' % (vlds, vlds))
    e('v_lshlrev_b32 v%d, 6, v11' % vglb)
    e('v_lshl_add_u32 v%d, v9, 4, v%d' % (vglb, vglb))

e('s_cmp_ge_u32 s2, 256')
e('s_cbranch_scc1 L_end')
stamp(0)
e('s_load_dwordx16 s[4:19], s[0:1], 0')
e('s_load_dwordx8 s[20:27], s[0:1], 64')
e('v_and_b32 v1, 63, v0')
e('v_lshrrev_b32 v2, 4, v1')
e('v_and_b32 v3, 15, v1')
e('v_lshrrev_b32 v4, 6, v0')
e('s_mov_b32 s%d, 0x05040100' % S_SEL0)
e('v_readfirstlane_b32 s%d, v4' % S_WAVE)
e('s_mov_b32 s%d, 0x07060302' % S_SEL1)
e('s_waitcnt lgkmcnt(0)')

if OPT['pref']:
    cmt('---- code prefetch into L2 (wave 7 of the first 16 WGs)')
    e('s_cmp_lg_u32 s%d, 7' % S_WAVE)
    e('s_cbranch_scc1 L_nopref')
    e('s_cmp_ge_u32 s2, 16')
    e('s_cbranch_scc1 L_nopref')
    e('s_getpc_b64 s[44:45]')
    e('v_lshlrev_b32 v4, 4, v1')
    e('PREFETCH_PLACEHOLDER')
    lab('L_nopref')

e('s_or_b32 s44, s2, s%d' % S_WAVE)
e('s_cmp_lg_u32 s44, 0')
e('s_cbranch_scc1 L_nononce')
e('s_memrealtime s[44:45]')
e('s_waitcnt lgkmcnt(0)')
e('s_or_b32 s44, s44, 1')
e('v_mov_b32 v4, s44')
e('v_mov_b32 v5, 0')
e('s_mov_b64 exec, 1')
e('global_store_dword v5, v4, %s sc1' % sr(S_DBG))
e('s_mov_b64 exec, -1')
lab('L_nononce')

e('s_sub_u32 s58, s%d, 1' % S_WAVE)
e('s_cmp_ge_u32 s58, 4')
e('s_cbranch_scc1 L_nox')
e('s_lshl_b32 s44, s58, 11')
e('v_lshlrev_b32 v4, 4, v1')
e('v_add_u32 v4, s44, v4')
e('global_load_dwordx4 %s, v4, %s' % (vr(TMP), sr(S_X)))
e('global_load_dwordx4 %s, v4, %s offset:1024' % (vr(TMP + 4), sr(S_X)))
lab('L_nox')

e('s_cmp_ge_u32 s2, 128')
e('s_cbranch_scc1 L_t1wo')
e('s_lshr_b32 s44, s2, 5')
e('s_lshl_b32 s44, s44, 8')
e('s_lshl_b32 s45, s%d, 5' % S_WAVE)
e('s_add_u32 s44, s44, s45')
e('s_lshl_b32 s46, s44, 13')
e('s_and_b32 s45, s2, 31')
e('s_lshl_b32 s45, s45, 8')
e('s_add_u32 s46, s46, s45')
add64(S_T1, S_WQ, 46)
e('s_mov_b32 s%d, 8192' % S_RS1)
e('s_mov_b32 s47, s44')
e('s_branch L_t1done')
lab('L_t1wo')
e('s_sub_u32 s44, s2, 128')
e('s_lshr_b32 s45, s44, 1')
e('s_lshl_b32 s45, s45, 6')
e('s_lshr_b32 s46, s%d, 2' % S_WAVE)
e('s_lshl_b32 s46, s46, 5')
e('s_add_u32 s45, s45, s46')
e('s_lshl_b32 s45, s45, 11')
e('s_and_b32 s46, s44, 1')
e('s_lshl_b32 s46, s46, 10')
e('s_add_u32 s45, s45, s46')
e('s_and_b32 s46, s%d, 3' % S_WAVE)
e('s_lshl_b32 s46, s46, 8')
e('s_add_u32 s45, s45, s46')
add64(S_T1, S_WO, 45)
e('s_mov_b32 s%d, 2048' % S_RS1)
e('s_mov_b32 s47, 0')
lab('L_t1done')
e('s_cmp_ge_u32 s2, 112')
e('s_cselect_b32 s48, 1, 0')
e('s_mul_i32 s44, s48, 112')
e('s_sub_u32 s44, s2, s44')
e('s_mul_i32 s45, s44, 2341')
e('s_lshr_b32 s49, s45, 16')
e('s_mul_i32 s45, s49, 28')
e('s_sub_u32 s50, s44, s45')
e('s_lshl_b32 s44, s49, 8')
e('s_lshl_b32 s45, s%d, 5' % S_WAVE)
e('s_add_u32 s51, s44, s45')
e('s_mul_i32 s44, s51, 7168')
e('s_lshl_b32 s45, s50, 8')
e('s_add_u32 s44, s44, s45')
e('s_cmp_eq_u32 s48, 0')
e('s_cselect_b32 s52, s%d, s%d' % (S_WG, S_WU))
e('s_cselect_b32 s53, s%d, s%d' % (S_WG + 1, S_WU + 1))
add64(S_T2, 52, 44)
e('s_lshl_b32 s44, s2, 17')
e('s_lshl_b32 s45, s%d, 14' % S_WAVE)
e('s_add_u32 s44, s44, s45')
add64(S_KB, S_K, 44)
add64(S_VB, S_V, 44)
e('s_lshr_b32 s44, s2, 2')
e('s_lshl_b32 s44, s44, 6')
e('s_lshr_b32 s45, s%d, 1' % S_WAVE)
e('s_and_b32 s45, s45, 1')
e('s_lshl_b32 s45, s45, 5')
e('s_add_u32 s44, s44, s45')
e('s_lshl_b32 s44, s44, 11')
e('s_and_b32 s45, s2, 3')
e('s_lshl_b32 s45, s45, 9')
e('s_add_u32 s44, s44, s45')
e('s_and_b32 s45, s%d, 1' % S_WAVE)
e('s_lshl_b32 s45, s45, 8')
e('s_add_u32 s44, s44, s45')
add64(S_WDB, S_WD, 44)

e('s_cmp_ge_u32 s58, 4')
e('s_cbranch_scc1 L_noln')
e('s_waitcnt vmcnt(0)')
X = TMP + 8
for i in range(8):
    e('v_lshlrev_b32 v%d, 16, v%d' % (X + 2 * i, TMP + i))
    e('v_and_b32 v%d, 0xffff0000, v%d' % (X + 2 * i + 1, TMP + i))
e('v_add_f32 v4, v%d, v%d' % (X, X + 1))
for i in range(2, 16):
    e('v_add_f32 v4, v4, v%d' % (X + i))
row_allreduce('add', 4)
xrow_allreduce('add', 4, 5)
e('v_mul_f32 v4, 0x3a800000, v4')
e('v_sub_f32 v5, v%d, v4' % X)
e('v_mul_f32 v6, v5, v5')
for i in range(1, 16):
    e('v_sub_f32 v5, v%d, v4' % (X + i))
    e('v_fmac_f32 v6, v5, v5')
row_allreduce('add', 6)
xrow_allreduce('add', 6, 5)
e('v_mul_f32 v6, 0x3a800000, v6')
bf16_round(4, 4)
bf16_round(6, 6)
e('v_add_f32 v6, %s, v6' % f32(1e-5))
bf16_round(6, 6)
e('v_sqrt_f32 v6, v6')
e('s_nop 0')
bf16_round(6, 6)
e('v_rcp_f32 v7, v6')
e('s_nop 0')
for i in range(16):
    e('v_sub_f32 v5, v%d, v4' % (X + i))
    bf16_round(5, 5)
    e('v_mul_f32 v8, v5, v7')
    e('v_fma_f32 v9, -v8, v6, v5')
    e('v_fma_f32 v%d, v9, v7, v8' % (X + i))
for i in range(8):
    e('v_cvt_pk_bf16_f32 v%d, v%d, v%d' % (TMP + i, X + 2 * i, X + 2 * i + 1))
e('s_lshl_b32 s44, s58, 11')
e('v_lshlrev_b32 v4, 4, v1')
e('v_add_u32 v4, s44, v4')
e('ds_write_b128 v4, %s offset:%d' % (vr(TMP), XN))
e('ds_write_b128 v4, %s offset:%d' % (vr(TMP + 4), XN + 1024))
lab('L_noln')

e('s_cmp_lt_u32 s2, 128')
e('s_cselect_b64 exec, -1, 0')
load_block(T1, S_T1, 's%d' % S_RS1, 4)
e('s_cmp_lt_u32 s2, 224')
e('s_cselect_b64 exec, -1, 0')
load_block(T2, S_T2, 7168, 5)
e('s_cmp_ge_u32 s%d, 3' % S_WAVE)
e('s_cselect_b64 exec, -1, 0')
load_K(6, 0, NKE)
e('s_mov_b64 exec, -1')

e('s_cmp_lg_u32 s%d, 0' % S_WAVE)
e('s_cbranch_scc1 L_noclr')
e('v_mov_b32 v4, %d' % NONCE)
e('v_mov_b32 v6, 0')
e('v_mov_b32 v7, 0')
e('ds_write_b64 v4, v[6:7] offset:8')
e('ds_write_b64 v4, v[6:7] offset:16')
lab('L_noclr')
stamp(1)
e('s_waitcnt lgkmcnt(0)')
e('s_barrier')
stamp(2)

e('v_and_b32 v4, 3, v3')
e('v_lshlrev_b32 v4, 11, v4')
e('v_lshl_add_u32 v4, v2, 4, v4')
e('s_lshl_b32 s44, s%d, 11' % S_WAVE)
e('v_lshlrev_b32 v6, 5, v3')
e('v_add_u32 v6, s44, v6')
e('s_cmp_ge_u32 s2, 128')
e('s_cbranch_scc1 L_noq')
e('s_lshl_b32 s44, s47, 1')
e('v_add_u32 v5, s44, v4')
e('ds_read_b128 %s, v5 offset:%d' % (vr(AF), XN))
e('s_waitcnt vmcnt(%d) lgkmcnt(0)' % (8 + NKE))
gemv_block(T1, AF, VV, False)
e('v_add_u32 v7, %d, v6' % P1)
write_part(VV, False, 7, '0xffff', 256)
lab('L_noq')
e('s_cmp_ge_u32 s2, 224')
e('s_cbranch_scc1 L_nogu')
e('s_lshl_b32 s44, s51, 1')
e('v_add_u32 v5, s44, v4')
e('ds_read_b128 %s, v5 offset:%d' % (vr(AF), XN))
e('s_waitcnt vmcnt(%d) lgkmcnt(0)' % NKE)
gemv_block(T2, AF, VV + 32, False)
e('v_add_u32 v7, %d, v6' % P2)
write_part(VV + 32, False, 7, '0xffff', 256)
lab('L_nogu')

e('s_cmp_lg_u32 s%d, 0' % S_WAVE)
e('s_cbranch_scc1 L_nononce2')
e('s_mov_b32 s%d, 0' % S_SPIN)
e('v_mov_b32 v5, 0')
lab('L_noncepoll')
e('global_load_dword v4, v5, %s sc1' % sr(S_DBG))
e('s_waitcnt vmcnt(0)')
e('v_readfirstlane_b32 s44, v4')
e('s_cmp_lg_u32 s44, 0')
e('s_cbranch_scc1 L_noncegot')
e('s_add_u32 s%d, s%d, 1' % (S_SPIN, S_SPIN))
e('s_cmp_ge_u32 s%d, %d' % (S_SPIN, SPIN_MAX))
e('s_cbranch_scc1 L_noncegot')
e('s_sleep 1')
e('s_branch L_noncepoll')
lab('L_noncegot')
e('v_mov_b32 v5, %d' % NONCE)
e('ds_write_b32 v5, v4')
lab('L_nononce2')
stamp(3)
e('s_waitcnt lgkmcnt(0)')
e('s_barrier')
e('v_mov_b32 v5, %d' % NONCE)
e('ds_read_b32 v4, v5')
stamp(4)

e('s_and_b32 s44, s%d, 3' % S_WAVE)
e('s_waitcnt lgkmcnt(0)')
e('v_readfirstlane_b32 s%d, v4' % S_TAG)
e('s_cmp_lt_u32 s%d, 4' % S_WAVE)
e('s_cbranch_scc0 L_pubgu')
e('s_cmp_ge_u32 s2, 128')
e('s_cbranch_scc1 L_pubdone')
e('s_mov_b32 s45, %d' % P1)
e('s_lshr_b32 s46, s2, 5')
e('s_lshl_b32 s46, s46, 2')
e('s_add_u32 s46, s46, s44')
e('s_lshl_b32 s46, s46, 15')
e('s_and_b32 s54, s2, 31')
e('s_lshl_b32 s54, s54, 10')
e('s_add_u32 s46, s46, s54')
e('s_add_u32 s46, s46, %d' % QP)
e('s_branch L_pubgo')
lab('L_pubgu')
e('s_cmp_ge_u32 s2, 224')
e('s_cbranch_scc1 L_pubdone')
e('s_mov_b32 s45, %d' % P2)
e('s_lshl_b32 s46, s48, 2')
e('s_add_u32 s46, s46, s49')
e('s_lshl_b32 s46, s46, 2')
e('s_add_u32 s46, s46, s44')
e('s_mul_i32 s46, s46, 28672')
e('s_lshl_b32 s54, s50, 10')
e('s_add_u32 s46, s46, s54')
e('s_add_u32 s46, s46, %d' % GP)
lab('L_pubgo')
e('s_lshl_b32 s44, s44, 9')
e('s_add_u32 s45, s45, s44')
e('v_lshlrev_b32 v4, 3, v1')
e('v_add_u32 v4, s45, v4')
for v in range(8):
    e('ds_read_b64 %s, v4 offset:%d' % (vr(TMP + 2 * v, 2), v * 2048))
e('v_lshlrev_b32 v5, 4, v1')
e('v_add_u32 v5, s46, v5')
e('v_mov_b32 v9, s%d' % S_TAG)
e('v_mov_b32 v11, s%d' % S_TAG)
e('s_waitcnt lgkmcnt(0)')
e('v_add_f32 v8, v%d, v%d' % (TMP, TMP + 2))
e('v_add_f32 v10, v%d, v%d' % (TMP + 1, TMP + 3))
for v in range(2, 8):
    e('v_add_f32 v8, v8, v%d' % (TMP + 2 * v))
    e('v_add_f32 v10, v10, v%d' % (TMP + 2 * v + 1))
e('global_store_dwordx4 v5, v[8:11], %s sc1' % sr(S_WS))
lab('L_pubdone')

QS = P1
QS = P4
e('s_cmp_ge_u32 s%d, 3' % S_WAVE)
e('s_cbranch_scc1 L_bulk')
THR[0] = OPT['thrg']
load_K(6, 0, 16)
load_V(6)
THR[0] = 0
e('s_cmp_eq_u32 s%d, 2' % S_WAVE)
e('s_cbranch_scc1 L_hgather')
e('s_lshr_b32 s44, s2, 4')
e('s_lshl_b32 s44, s44, 13')
e('s_lshl_b32 s45, s%d, 18' % S_WAVE)
e('s_add_u32 s44, s44, s45')
e('s_add_u32 s44, s44, %d' % (QP + 0x1000))
e('v_lshlrev_b32 v4, 4, v1')
e('v_add_u32 v4, s44, v4')
QB = [T1, T2]
def _q():
    for ks in range(2):
        e('v_add_u32 v5, %d, v4' % (ks * 131072))
        for h in range(8):
            e('global_load_dwordx4 %s, v5, %s offset:%d sc1' % (vr(QB[ks] + 4 * h), sr(S_WS), h * 1024 - 4096))
spin_loop(_q, [QB[k] + 4 * i + o for k in range(2) for i in range(8) for o in (1, 3)], 10, 11, sleep=4)
for h in range(8):
    for p in range(2):
        e('v_add_f32 v%d, v%d, v%d' % (TMP + 2 * h + p, QB[0] + 4 * h + 2 * p, QB[1] + 4 * h + 2 * p))
e('v_lshlrev_b32 v6, 3, v1')
e('s_cmp_eq_u32 s%d, 0' % S_WAVE)
e('s_cbranch_scc1 L_q0')
for h in range(8):
    e('ds_write_b64 v6, %s offset:%d' % (vr(TMP + 2 * h, 2), QS + 512 * h))
lds_flag_set(NONCE + 16)
stamp(5)
e('s_branch L_wo_ld')
lab('L_q0')
lds_flag_wait(NONCE + 16)
for h in range(8):
    e('ds_read_b64 %s, v6 offset:%d' % (vr(TMP + 16 + 2 * h, 2), QS + 512 * h))
e('v_lshlrev_b32 v5, 2, v1')
e('s_waitcnt lgkmcnt(0)')
for h in range(8):
    e('v_add_f32 v%d, v%d, v%d' % (TMP + 2 * h, TMP + 2 * h, TMP + 16 + 2 * h))
    e('v_add_f32 v%d, v%d, v%d' % (TMP + 2 * h + 1, TMP + 2 * h + 1, TMP + 16 + 2 * h + 1))
    e('v_cvt_pk_bf16_f32 v6, v%d, v%d' % (TMP + 2 * h, TMP + 2 * h + 1))
    e('ds_write_b32 v5, v6 offset:%d' % (QL + QLS * h))
lds_flag_set(NONCE + 8)
stamp(5)
e('s_branch L_wo_ld')

lab('L_hgather')
e('s_cmp_ge_u32 s2, 224')
e('s_cbranch_scc1 L_wo_ld')
e('s_lshr_b32 s44, s2, 2')
e('s_lshl_b32 s44, s44, 9')
e('s_add_u32 s44, s44, %d' % GP)
e('v_lshrrev_b32 v4, 5, v1')
e('v_mul_u32_u24 v4, %d, v4' % (16 * 28672))
e('v_and_b32 v5, 31, v1')
e('v_lshlrev_b32 v5, 4, v5')
e('v_add3_u32 v4, v4, v5, s44')
HB = T1
def _h():
    e('v_mov_b32 v5, v4')
    for i in range(16):
        e('global_load_dwordx4 %s, v5, %s sc1' % (vr(HB + 4 * i), sr(S_WS)))
        if i < 15:
            e('v_add_u32 v5, 28672, v5')
spin_loop(_h, [HB + 4 * i + 1 for i in range(16)] + [HB + 4 * i + 3 for i in range(16)], 10, 11, sleep=4)
for b in range(4):
    for p in range(2):
        d = TMP + 2 * b + p
        e('v_add_f32 v%d, v%d, v%d' % (d, HB + 4 * b + 2 * p, HB + 4 * (4 + b) + 2 * p))
        e('v_add_f32 v%d, v%d, v%d' % (d, d, HB + 4 * (8 + b) + 2 * p))
        e('v_add_f32 v%d, v%d, v%d' % (d, d, HB + 4 * (12 + b) + 2 * p))
        bf16_round(d, d)
        e('v_mov_b32 v%d, v%d' % (d + 8, d))
e('s_nop 1')
for i in range(8):
    e('v_permlane32_swap_b32 v%d, v%d' % (TMP + i, TMP + 8 + i))
e('s_nop 1')
for i in range(8):
    g_ = TMP + i; u_ = TMP + 8 + i
    e('v_mul_f32 v4, v%d, v%d' % (g_, g_))
    e('v_mul_f32 v4, v4, v%d' % g_)
    e('v_mov_b32 v5, %s' % f32(0.044715))
    e('v_fma_f32 v4, v4, v5, v%d' % g_)
    e('v_mul_f32 v4, %s, v4' % f32(-2.0 * 0.7978845608028654 * 1.4426950408889634))
    sigmoid_mul(6, g_, 4, 5)
    bf16_round(6, 6)
    e('v_mul_f32 v%d, v6, v%d' % (g_, u_))
e('v_and_b32 v5, 31, v1')
e('v_lshlrev_b32 v5, 2, v5')
for b in range(4):
    e('v_cvt_pk_bf16_f32 v6, v%d, v%d' % (TMP + 2 * b, TMP + 2 * b + 1))
    e('ds_write_b32 v5, v6 offset:%d' % (HL + 128 * b))
lds_flag_set(NONCE + 12)
stamp(5)
e('s_branch L_wo_ld')

lab('L_bulk')
THR[0] = OPT['thr']
e('s_cmp_ge_u32 s%d, 4' % S_WAVE)
e('s_cselect_b32 s44, 1, 0')
e('s_cmp_lt_u32 s2, 224')
e('s_cselect_b32 s45, 1, 0')
e('s_and_b32 s44, s44, s45')
e('s_cmp_lg_u32 s44, 0')
e('s_cselect_b64 exec, -1, 0')
load_block(T2, S_WDB, 2048, 5)
e('s_mov_b64 exec, -1')
load_K(6, NKE, 16)
load_V(6)
lab('L_wo_ld')
e('s_cmp_ge_u32 s2, 128')
e('s_cselect_b64 exec, -1, 0')
load_block(T1, S_T1, 2048, 4)
e('s_mov_b64 exec, -1')
THR[0] = 0
e('s_cmp_ge_u32 s%d, 4' % S_WAVE)
e('s_cselect_b32 s44, 1, 0')
e('s_cmp_lt_u32 s2, 224')
e('s_cselect_b32 s45, 1, 0')
e('s_and_b32 s57, s44, s45')
stamp(6)
NKR = 16 - NKE

e('s_cmp_eq_u32 s57, 0')
e('s_cbranch_scc1 L_nodown')
lds_flag_wait(NONCE + 12)
e('s_lshr_b32 s44, s%d, 1' % S_WAVE)
e('s_and_b32 s44, s44, 1')
e('s_lshl_b32 s44, s44, 6')
e('v_and_b32 v4, 3, v3')
e('v_lshlrev_b32 v4, 7, v4')
e('v_lshl_add_u32 v4, v2, 4, v4')
e('v_add_u32 v4, s44, v4')
e('ds_read_b128 %s, v4 offset:%d' % (vr(AF), HL))
e('s_waitcnt vmcnt(%d) lgkmcnt(0)' % (NKR + 24))
gemv_block(T2, AF, T2, False)
e('s_sub_u32 s44, s%d, 4' % S_WAVE)
e('s_lshl_b32 s44, s44, 11')
e('s_add_u32 s44, s44, %d' % P3)
e('v_lshlrev_b32 v7, 5, v3')
e('v_add_u32 v7, s44, v7')
write_part(T2, False, 7, '0xffff', 256)
lab('L_nodown')

lds_flag_wait(NONCE + 8)
stamp(7)
QF = TMP
SV = TMP + 16
e('v_and_b32 v4, 7, v3')
e('v_mul_u32_u24 v4, %d, v4' % QLS)
e('v_lshl_add_u32 v4, v2, 4, v4')
for t in range(4):
    e('ds_read_b128 %s, v4 offset:%d' % (vr(QF + 4 * t), QL + 64 * t))
e('s_waitcnt vmcnt(24) lgkmcnt(0)')
stamp(8)
for T in range(4):
    for t in range(4):
        e('v_mfma_f32_16x16x32_bf16 %s, %s, %s, %s' % (vr(SV + 4 * T), ar(16 * T + 4 * t), vr(QF + 4 * t), '0' if t == 0 else vr(SV + 4 * T)))
e('s_nop 7')
e('s_mov_b32 s44, %s' % f32(128 ** -0.5))
for i in range(0, 16, 2):
    e('v_cvt_pk_bf16_f32 v4, v%d, v%d' % (SV + i, SV + i + 1))
    e('v_lshlrev_b32 v5, 16, v4')
    e('v_and_b32 v6, 0xffff0000, v4')
    e('v_mul_f32 v5, s44, v5')
    e('v_mul_f32 v6, s44, v6')
    e('v_cvt_pk_bf16_f32 v4, v5, v6')
    e('v_lshlrev_b32 v%d, 16, v4' % (SV + i))
    e('v_and_b32 v%d, 0xffff0000, v4' % (SV + i + 1))
e('v_max3_f32 v8, v%d, v%d, v%d' % (SV, SV + 1, SV + 2))
for i in range(3, 15, 2):
    e('v_max3_f32 v8, v8, v%d, v%d' % (SV + i, SV + i + 1))
e('v_max_f32 v8, v8, v%d' % (SV + 15))
xrow_allreduce('max', 8, 5)
e('s_mov_b32 s44, 0x%x' % LOG2E)
e('v_mul_f32 v5, s44, v8')
for i in range(16):
    e('v_fma_f32 v%d, v%d, s44, -v5' % (SV + i, SV + i))
    e('v_exp_f32 v%d, v%d' % (SV + i, SV + i))
e('s_nop 0')
e('v_add_f32 v9, v%d, v%d' % (SV, SV + 1))
for i in range(2, 16):
    e('v_add_f32 v9, v9, v%d' % (SV + i))
xrow_allreduce('add', 9, 5)
for i in range(8):
    e('v_cvt_pk_bf16_f32 v%d, v%d, v%d' % (PREG + i, SV + 2 * i, SV + 2 * i + 1))
e('s_waitcnt vmcnt(16)')
gemv_block(VV, PREG, 0, True, first=True)
e('s_waitcnt vmcnt(8)')
stamp(9)
gemv_block(VV + 32, PREG + 4, 0, True, first=False)
e('s_lshl_b32 s44, s%d, 6' % S_WAVE)
e('v_lshlrev_b32 v4, 3, v1')
e('v_add_u32 v4, s44, v4')
e('s_mov_b64 exec, 0xff')
e('ds_write_b64 v4, v[8:9] offset:%d' % MLL)
e('s_mov_b64 exec, -1')
e('s_lshl_b32 s44, s%d, 12' % S_WAVE)
e('s_add_u32 s44, s44, %d' % OV)
e('v_lshlrev_b32 v7, 5, v3')
e('v_lshl_add_u32 v7, v2, 11, v7')
e('v_add_u32 v7, s44, v7')
write_part(0, True, 7, '0xffffffff', 512)
e('s_waitcnt lgkmcnt(0)')
e('s_barrier')
stamp(10)

e('s_lshl_b32 s44, s%d, 3' % S_WAVE)
e('v_mov_b32 v4, s44')
for v in range(8):
    e('ds_read_b64 %s, v4 offset:%d' % (vr(TMP + 2 * v, 2), MLL + 64 * v))
e('s_lshl_b32 s44, s%d, 9' % S_WAVE)
e('s_add_u32 s44, s44, %d' % OV)
e('v_lshlrev_b32 v5, 3, v1')
e('v_add_u32 v5, s44, v5')
for v in range(8):
    e('ds_read_b64 %s, v5 offset:%d' % (vr(VV + 2 * v, 2), 4096 * v))
e('s_lshl_b32 s44, s2, 3')
e('s_add_u32 s44, s44, s%d' % S_WAVE)
e('s_lshl_b32 s44, s44, 10')
e('s_add_u32 s44, s44, %d' % OP)
e('v_lshlrev_b32 v%d, 4, v1' % (TMP + 16))
e('v_add_u32 v%d, s44, v%d' % (TMP + 16, TMP + 16))
e('s_lshr_b32 s44, s2, 4')
e('s_lshl_b32 s44, s44, 3')
e('s_add_u32 s44, s44, s%d' % S_WAVE)
e('s_lshl_b32 s44, s44, 4')
e('s_and_b32 s45, s2, 15')
e('s_add_u32 s44, s44, s45')
e('s_lshl_b32 s44, s44, 4')
e('s_add_u32 s44, s44, %d' % ML)
e('v_mov_b32 v%d, s44' % (TMP + 17))
e('v_mov_b32 v5, s%d' % S_TAG)
e('v_mov_b32 v7, s%d' % S_TAG)
e('v_mov_b32 v9, s%d' % S_TAG)
e('v_mov_b32 v11, s%d' % S_TAG)
e('s_waitcnt lgkmcnt(0)')
e('v_max3_f32 v8, v%d, v%d, v%d' % (TMP, TMP + 2, TMP + 4))
e('v_max3_f32 v8, v8, v%d, v%d' % (TMP + 6, TMP + 8))
e('v_max3_f32 v8, v8, v%d, v%d' % (TMP + 10, TMP + 12))
e('v_max_f32 v8, v8, v%d' % (TMP + 14))
e('s_mov_b32 s46, 0x%x' % LOG2E)
for v in range(8):
    e('v_sub_f32 v%d, v%d, v8' % (TMP + 2 * v, TMP + 2 * v))
    e('v_mul_f32 v%d, s46, v%d' % (TMP + 2 * v, TMP + 2 * v))
    e('v_exp_f32 v%d, v%d' % (TMP + 2 * v, TMP + 2 * v))
e('s_nop 0')
e('v_mul_f32 v4, v%d, v%d' % (TMP, VV))
e('v_mul_f32 v6, v%d, v%d' % (TMP, VV + 1))
e('v_mul_f32 v10, v%d, v%d' % (TMP, TMP + 1))
for v in range(1, 8):
    e('v_fmac_f32 v4, v%d, v%d' % (TMP + 2 * v, VV + 2 * v))
    e('v_fmac_f32 v6, v%d, v%d' % (TMP + 2 * v, VV + 2 * v + 1))
    e('v_fmac_f32 v10, v%d, v%d' % (TMP + 2 * v, TMP + 2 * v + 1))
e('global_store_dwordx4 v%d, v[4:7], %s sc1' % (TMP + 16, sr(S_WS)))
e('s_mov_b64 exec, 1')
e('global_store_dwordx4 v%d, v[8:11], %s sc1' % (TMP + 17, sr(S_WS)))
e('s_mov_b64 exec, -1')
stamp(11)

e('s_cmp_ge_u32 s2, 224')
e('s_cbranch_scc1 L_nodpub')
e('s_and_b32 s44, s%d, 3' % S_WAVE)
e('s_lshr_b32 s45, s%d, 2' % S_WAVE)
e('s_lshl_b32 s46, s44, 9')
e('s_lshl_b32 s54, s45, 11')
e('s_add_u32 s46, s46, s54')
e('v_lshlrev_b32 v6, 3, v1')
e('v_add_u32 v6, s46, v6')
e('ds_read_b64 v[16:17], v6 offset:%d' % P3)
e('ds_read_b64 v[18:19], v6 offset:%d' % (P3 + 4096))
e('s_lshl_b32 s44, s44, 13')
e('s_lshl_b32 s45, s45, 10')
e('s_add_u32 s44, s44, s45')
e('s_lshr_b32 s45, s2, 2')
e('s_lshl_b32 s45, s45, 15')
e('s_add_u32 s44, s44, s45')
e('s_and_b32 s45, s2, 3')
e('s_lshl_b32 s45, s45, 11')
e('s_add_u32 s44, s44, s45')
e('s_add_u32 s44, s44, %d' % DP)
e('v_lshlrev_b32 v7, 4, v1')
e('v_add_u32 v7, s44, v7')
e('v_mov_b32 v13, s%d' % S_TAG)
e('v_mov_b32 v15, s%d' % S_TAG)
e('s_waitcnt lgkmcnt(0)')
e('v_add_f32 v12, v16, v18')
e('v_add_f32 v14, v17, v19')
e('global_store_dwordx4 v7, v[12:15], %s sc1' % sr(S_WS))
lab('L_nodpub')

e('s_cmp_lt_u32 s2, 128')
e('s_cbranch_scc1 L_final')
e('s_sub_u32 s44, s2, 128')
e('s_lshr_b32 s45, s44, 2')
e('s_lshr_b32 s46, s45, 3')
e('s_and_b32 s54, s45, 7')
e('s_lshr_b32 s55, s44, 1')
e('s_and_b32 s55, s55, 1')
e('s_lshl_b32 s56, s46, 17')
e('s_lshl_b32 s57, s54, 10')
e('s_add_u32 s56, s56, s57')
e('s_lshl_b32 s57, s55, 9')
e('s_add_u32 s56, s56, s57')
e('s_lshl_b32 s57, s%d, 6' % S_WAVE)
e('s_add_u32 s56, s56, s57')
e('s_add_u32 s56, s56, %d' % OP)
e('v_lshlrev_b32 v4, 19, v2')
e('v_lshlrev_b32 v5, 13, v3')
e('v_add3_u32 v4, v4, v5, s56')
e('s_lshl_b32 s56, s46, 11')
e('s_lshl_b32 s57, s54, 8')
e('s_add_u32 s56, s56, s57')
e('s_add_u32 s56, s56, %d' % ML)
e('v_lshlrev_b32 v5, 13, v2')
e('v_lshlrev_b32 v6, 4, v3')
e('v_add3_u32 v5, v5, v6, s56')
def _o():
    e('global_load_dwordx4 %s, v5, %s sc1' % (vr(VV + 16), sr(S_WS)))
    for i in range(4):
        e('global_load_dwordx4 %s, v4, %s offset:%d sc1' % (vr(VV + 4 * i), sr(S_WS), 16 * i))
spin_loop(_o, [VV + 4 * i + 1 for i in range(5)] + [VV + 4 * i + 3 for i in range(5)], 10, 11, sleep=1)
stamp(12)
e('v_mov_b32 v8, v%d' % (VV + 16))
row_allreduce('max', 8)
e('s_mov_b32 s44, 0x%x' % LOG2E)
e('v_sub_f32 v8, v%d, v8' % (VV + 16))
e('v_mul_f32 v8, s44, v8')
e('v_exp_f32 v8, v8')
e('s_nop 0')
e('v_mul_f32 v9, v8, v%d' % (VV + 18))
row_allreduce('add', 9)
e('v_rcp_f32 v10, v9')
e('s_nop 0')
e('v_fma_f32 v11, -v9, v10, 1.0')
e('v_fma_f32 v10, v11, v10, v10')
e('v_mul_f32 v8, v8, v10')
for i in range(8):
    e('v_mul_f32 v%d, v8, v%d' % (TMP + i, VV + 2 * i))
for sh in (8, 4, 2, 1):
    if sh == 8:
        e('s_nop 1')
    for i in range(8):
        e('v_add_f32_dpp v%d, v%d, v%d row_ror:%d row_mask:0xf bank_mask:0xf' % (TMP + i, TMP + i, TMP + i, sh))
for i in range(4):
    e('v_cvt_pk_bf16_f32 v%d, v%d, v%d' % (TMP + 8 + i, TMP + 2 * i, TMP + 2 * i + 1))
e('s_lshl_b32 s44, s%d, 4' % S_WAVE)
e('v_lshlrev_b32 v4, 7, v2')
e('v_add_u32 v4, s44, v4')
e('s_mov_b32 exec_lo, 0x00010001')
e('s_mov_b32 exec_hi, 0x00010001')
e('ds_write_b128 v4, %s offset:%d' % (vr(TMP + 8), OL))
e('s_mov_b64 exec, -1')
transpose_block(T1)
e('s_lshr_b32 s44, s%d, 2' % S_WAVE)
e('s_lshl_b32 s44, s44, 6')
e('v_and_b32 v4, 3, v3')
e('v_lshlrev_b32 v4, 7, v4')
e('v_lshl_add_u32 v4, v2, 4, v4')
e('v_add_u32 v4, s44, v4')
e('s_lshl_b32 s44, s%d, 11' % S_WAVE)
e('s_add_u32 s44, s44, %d' % P4)
e('v_lshlrev_b32 v7, 5, v3')
e('v_add_u32 v7, s44, v7')
e('s_waitcnt lgkmcnt(0)')
e('s_barrier')
stamp(13)
e('ds_read_b128 %s, v4 offset:%d' % (vr(AF), OL))
e('s_waitcnt lgkmcnt(0)')
for c in range(8):
    e('v_mfma_f32_16x16x32_bf16 %s, %s, %s, 0' % (ar(4 * c), vr(AF), vr(TMP + 4 * c)))
write_part(0, True, 7, '0xffff', 256)
e('s_and_b32 s44, s%d, 3' % S_WAVE)
e('s_lshr_b32 s45, s%d, 2' % S_WAVE)
e('s_lshl_b32 s46, s44, 9')
e('s_lshl_b32 s54, s45, 12')
e('s_add_u32 s46, s46, s54')
e('v_lshlrev_b32 v6, 3, v1')
e('v_add_u32 v6, s46, v6')
e('s_lshl_b32 s44, s44, 13')
e('s_lshl_b32 s45, s45, 11')
e('s_add_u32 s44, s44, s45')
e('s_sub_u32 s46, s2, 128')
e('s_lshr_b32 s45, s46, 1')
e('s_lshl_b32 s45, s45, 15')
e('s_add_u32 s44, s44, s45')
e('s_and_b32 s46, s46, 1')
e('s_lshl_b32 s46, s46, 12')
e('s_add_u32 s44, s44, s46')
e('s_add_u32 s44, s44, %d' % SP)
e('v_lshlrev_b32 v7, 4, v1')
e('v_add_u32 v7, s44, v7')
for rg in (9, 11, 13, 15):
    e('v_mov_b32 v%d, s%d' % (rg, S_TAG))
e('s_waitcnt lgkmcnt(0)')
e('s_barrier')
e('ds_read_b64 %s, v6 offset:%d' % (vr(TMP, 2), P4))
e('ds_read_b64 %s, v6 offset:%d' % (vr(TMP + 2, 2), P4 + 8192))
e('ds_read_b64 %s, v6 offset:%d' % (vr(TMP + 4, 2), P4 + 2048))
e('ds_read_b64 %s, v6 offset:%d' % (vr(TMP + 6, 2), P4 + 8192 + 2048))
e('s_waitcnt lgkmcnt(0)')
e('v_add_f32 v8, v%d, v%d' % (TMP, TMP + 2))
e('v_add_f32 v10, v%d, v%d' % (TMP + 1, TMP + 3))
e('v_add_f32 v12, v%d, v%d' % (TMP + 4, TMP + 6))
e('v_add_f32 v14, v%d, v%d' % (TMP + 5, TMP + 7))
e('global_store_dwordx4 v7, v[8:11], %s sc1' % sr(S_WS))
e('global_store_dwordx4 v7, v[12:15], %s offset:1024 sc1' % sr(S_WS))
stamp(14)

lab('L_final')
e('s_cmp_lg_u32 s%d, 0' % S_WAVE)
e('s_cbranch_scc1 L_fin2')
e('s_lshr_b32 s44, s2, 6')
e('s_lshl_b32 s44, s44, 13')
e('s_and_b32 s45, s2, 63')
e('s_lshl_b32 s45, s45, 7')
e('s_add_u32 s44, s44, s45')
e('v_lshrrev_b32 v4, 3, v1')
e('v_lshlrev_b32 v4, 15, v4')
e('v_and_b32 v5, 7, v1')
e('v_lshlrev_b32 v5, 4, v5')
e('v_add3_u32 v4, v4, v5, s44')
e('s_lshl_b32 s45, s2, 5')
e('v_lshrrev_b32 v6, 2, v5')
e('v_add_u32 v6, s45, v6')
e('global_load_dword v7, v6, %s' % sr(S_X))
def _f0():
    e('v_add_u32 v5, %d, v4' % (SP + 7 * 262144))
    e('global_load_dwordx4 %s, v5, %s sc1' % (vr(VV), sr(S_WS)))
spin_loop(_f0, [VV + 1, VV + 3], 10, 11, sleep=1)
def _f():
    for i in range(8):
        e('v_add_u32 v5, %d, v4' % (SP + i * 262144))
        e('global_load_dwordx4 %s, v5, %s sc1' % (vr(VV + 4 * i), sr(S_WS)))
    for i in range(7):
        e('v_add_u32 v5, %d, v4' % (DP + i * 262144))
        e('global_load_dwordx4 %s, v5, %s sc1' % (vr(VV + 32 + 4 * i), sr(S_WS)))
spin_loop(_f, [VV + 4 * i + 1 for i in range(15)] + [VV + 4 * i + 3 for i in range(15)], 10, 11, sleep=1)
e('v_add_f32 v8, v%d, v%d' % (VV, VV + 4))
e('v_add_f32 v9, v%d, v%d' % (VV + 2, VV + 6))
for i in range(2, 8):
    e('v_add_f32 v8, v8, v%d' % (VV + 4 * i))
    e('v_add_f32 v9, v9, v%d' % (VV + 4 * i + 2))
e('v_add_f32 v10, v%d, v%d' % (VV + 32, VV + 36))
e('v_add_f32 v11, v%d, v%d' % (VV + 34, VV + 38))
for i in range(2, 7):
    e('v_add_f32 v10, v10, v%d' % (VV + 32 + 4 * i))
    e('v_add_f32 v11, v11, v%d' % (VV + 32 + 4 * i + 2))
e('s_nop 1')
for rg in (8, 9, 10, 11):
    e('v_add_f32_dpp v%d, v%d, v%d row_ror:8 row_mask:0xf bank_mask:0xf' % (rg, rg, rg))
for rg in (8, 9, 10, 11):
    xrow_allreduce('add', rg, 5)
e('s_mov_b32 s44, 0x%x' % (LOG2E | 0x80000000))
e('v_lshlrev_b32 v12, 16, v7')
e('v_and_b32 v13, 0xffff0000, v7')
for k in range(2):
    s_ = 8 + k; d_ = 10 + k; x_ = 12 + k
    bf16_round(s_, s_)
    bf16_round(d_, d_)
    e('v_mul_f32 v4, s44, v%d' % d_)
    sigmoid_mul(5, d_, 4, 14)
    bf16_round(5, 5)
    e('v_mul_f32 v5, v%d, v5' % s_)
    bf16_round(5, 5)
    e('v_add_f32 v%d, v%d, v5' % (x_, x_))
e('v_cvt_pk_bf16_f32 v12, v12, v13')
e('s_mov_b64 exec, 0xff')
e('global_store_dword v6, v12, %s' % sr(S_OUT))
lab('L_fin2')
if OPT['stamps']:
    stamp(15)
    e('s_mov_b64 exec, 1')
    e('s_waitcnt lgkmcnt(0)')
    e('s_lshl_b32 s44, s2, 3')
    e('s_add_u32 s44, s44, s%d' % S_WAVE)
    e('s_lshl_b32 s44, s44, 6')
    e('s_add_u32 s44, s44, %d' % STAMPS)
    e('v_mov_b32 v5, s44')
    for i in range(16):
        e('v_mov_b32 v4, s%d' % (64 + 2 * i))
        e('global_store_dword v5, v4, %s offset:%d' % (sr(S_WS), 4 * i))
lab('L_end')
e('s_endpgm')

if OPT['pref']:
    import subprocess, re
    body = '\n'.join(x for x in L if 'PREFETCH_PLACEHOLDER' not in x)
    open('_sz.s', 'w').write('.amdgcn_target "amdgcn-amd-amdhsa--gfx950"\n.text\n' + body + '\n')
    subprocess.check_call(['clang', '-x', 'assembler', '-target', 'amdgcn-amd-amdhsa', '-mcpu=gfx950', '-c', '_sz.s', '-o', '_sz.o'])
    out = subprocess.check_output(['llvm-readelf', '-S', '_sz.o']).decode()
    tsz = int(re.search(r'\.text\s+PROGBITS\s+\S+\s+\S+\s+(\S+)', out).group(1), 16)
    nkb = (tsz - 128) // 1024
    print('code bytes', tsz, 'prefetch KB', nkb)
    pl = []
    for i in range(nkb):
        pl.append('    global_load_dwordx4 v[%d:%d], v4, s[44:45]' % (TMP + 28, TMP + 31))
        pl.append('    v_add_u32 v4, 1024, v4')
    idx = L.index('    PREFETCH_PLACEHOLDER')
    L[idx:idx + 1] = pl

hdr = open('cdna_kernels/%s.s.ref' % NAME).read().split('; Override')[0]
src = hdr
src += '; @launch grid=(256,1,1) block=(512,1,1) lds=%d\n' % LDS_BYTES
src += '.amdgcn_target "amdgcn-amd-amdhsa--gfx950"\n.text\n'
src += '.globl %s_kernel\n.p2align 8\n.type %s_kernel,@function\n%s_kernel:\n' % (NAME, NAME, NAME)
src += '\n'.join(L) + '\n'
src += '''.section .rodata,"a"
.p2align 6
.amdhsa_kernel %s_kernel
  .amdhsa_next_free_vgpr 248
  .amdhsa_next_free_sgpr 100
  .amdhsa_accum_offset %d
  .amdhsa_group_segment_fixed_size 0
  .amdhsa_kernarg_size 96
  .amdhsa_user_sgpr_count 2
  .amdhsa_user_sgpr_kernarg_segment_ptr 1
  .amdhsa_system_sgpr_workgroup_id_x 1
.end_amdhsa_kernel
''' % (NAME, NV)
open(OUT, 'w').write(src)
print('wrote', OUT, len(L), 'lines')
```

```python
import sys, struct
def f32(x):
    return '0x%08x' % struct.unpack('<I', struct.pack('<f', x))[0]

NAME = 'recurrent_scan__gqa_block_cached__glu_gated_geglu__decode'
OUT = 'cdna_kernels/%s.s' % NAME

OPT = dict(nt=1, stamps=0, nke=4, pref=1, thr=8, thrg=0, late=0)
for a in sys.argv[1:]:
    if '=' in a:
        k, v = a.split('=')
        if k == 'out':
            OUT = v
        else:
            OPT[k] = int(v)

L = []
def e(s):
    L.append('    ' + s)
def lab(s):
    L.append(s + ':')
def cmt(s):
    L.append('    ; ' + s)
_uid = [0]
def uid(p):
    _uid[0] += 1
    return '%s_%d' % (p, _uid[0])

QP = 0x000000
GP = 0x080000
OP = 0x200000
ML = 0x400000
SP = 0x500000
DP = 0x700000
STAMPS = 0x1000000

XN = 0
NONCE = 8192
QL = 8448
QLS = 272
HL = 10752
OL = 11264
MLL = 11776
P1 = 12288
P2 = 28672
P3 = 45056
P4 = 53248
OV = 69632
LDS_BYTES = 102400

T1 = 24
T2 = 56
VV = 88
TMP = 152
NV = 188
PREG = 12
AF = 20
S_X, S_K, S_V, S_WQ, S_WO, S_WG, S_WU, S_WD, S_OUT, S_DBG, S_WS = 4, 6, 8, 10, 12, 16, 18, 20, 22, 24, 26
S_WAVE, S_TAG, S_SEL0, S_SEL1 = 28, 29, 30, 31
S_T1, S_T2, S_KB, S_VB, S_WDB = 32, 34, 36, 38, 40
S_RS1 = 42
S_SPIN = 62
S_TG = 96
VFF = 184
LOG2E = 0x3fb8aa3b
SPIN_MAX = 200000
NKE = OPT['nke']

NT = ' nt' if OPT['nt'] else ''

def stamp(i):
    if OPT['stamps']:
        e('s_memrealtime s[%d:%d]' % (64 + 2 * i, 65 + 2 * i))

def vr(b, n=4):
    return 'v[%d:%d]' % (b, b + n - 1)
def ar(b, n=4):
    return 'a[%d:%d]' % (b, b + n - 1)
def sr(b, n=2):
    return 's[%d:%d]' % (b, b + n - 1)

def add64(dst, base, off_sreg):
    e('s_add_u32 s%d, s%d, s%d' % (dst, base, off_sreg))
    e('s_addc_u32 s%d, s%d, 0' % (dst + 1, base + 1))

THR = [0]
def thr():
    if THR[0]:
        e('s_waitcnt vmcnt(%d)' % (THR[0] - 1))

def load_block(dst, sbase, rs, vtmp):
    if isinstance(rs, int):
        e('v_mul_u32_u24 v%d, %d, v2' % (vtmp, 8 * rs))
    else:
        e('s_lshl_b32 s59, %s, 3' % rs)
        e('v_mul_u32_u24 v%d, s59, v2' % vtmp)
    e('v_lshl_add_u32 v%d, v3, 4, v%d' % (vtmp, vtmp))
    for i in range(8):
        thr()
        e('global_load_dwordx4 %s, v%d, %s%s' % (vr(dst + 4 * i), vtmp, sr(sbase), NT))
        if i < 7:
            e('v_add_u32 v%d, %s, v%d' % (vtmp, str(rs), vtmp))

def load_K(vtmp, lo, hi):
    if lo >= hi:
        return
    e('v_lshlrev_b32 v%d, 8, v3' % vtmp)
    e('v_lshl_add_u32 v%d, v2, 4, v%d' % (vtmp, vtmp))
    cur = 0
    for n in range(lo, hi):
        T, t = n >> 2, n & 3
        if T * 4096 != cur:
            e('v_add_u32 v%d, %d, v%d' % (vtmp, T * 4096 - cur, vtmp))
            cur = T * 4096
        thr()
        e('global_load_dwordx4 %s, v%d, %s offset:%d%s' % (ar(16 * T + 4 * t), vtmp, sr(S_KB), t * 64, NT))

def load_V(vtmp):
    e('v_lshlrev_b32 v%d, 10, v2' % vtmp)
    e('v_lshl_add_u32 v%d, v3, 4, v%d' % (vtmp, vtmp))
    e('v_add_u32 v%d, 0x1000, v%d' % (vtmp, vtmp))
    for B in range(2):
        for j in range(8):
            off = (j >> 2) * 4096 - 4096 + (j & 3) * 256
            thr()
            e('global_load_dwordx4 %s, v%d, %s offset:%d%s' % (vr(VV + 32 * B + 4 * j), vtmp, sr(S_VB), off, NT))
        if B == 0:
            e('v_add_u32 v%d, 0x2000, v%d' % (vtmp, vtmp))

def transpose_block(T):
    for c in range(8):
        d = c >> 1
        sel = S_SEL0 if c % 2 == 0 else S_SEL1
        for jj in range(4):
            e('v_perm_b32 v%d, v%d, v%d, s%d' % (TMP + 4 * c + jj, T + 4 * (2 * jj + 1) + d, T + 4 * (2 * jj) + d, sel))

def gemv_block(T, A, acc, agpr, first=True):
    transpose_block(T)
    e('s_nop 1')
    f = ar if agpr else vr
    for c in range(8):
        e('v_mfma_f32_16x16x32_bf16 %s, %s, %s, %s' % (f(acc + 4 * c), vr(A), vr(TMP + 4 * c), '0' if first else f(acc + 4 * c)))

def write_part(acc, agpr, vaddr, nlanes_mask, cstride=None):
    e('s_nop 7')
    for i in range(4):
        for c in range(8):
            if agpr:
                e('v_accvgpr_read_b32 v%d, a%d' % (TMP + 8 * i + c, acc + 4 * c + i))
            else:
                e('v_mov_b32 v%d, v%d' % (TMP + 8 * i + c, acc + 4 * c + i))
    e('s_mov_b32 exec_lo, %s' % nlanes_mask)
    e('s_mov_b32 exec_hi, 0')
    for i in range(4):
        e('ds_write_b128 v%d, %s offset:%d' % (vaddr, vr(TMP + 8 * i), i * 512))
        e('ds_write_b128 v%d, %s offset:%d' % (vaddr, vr(TMP + 8 * i + 4), i * 512 + 16))
    e('s_mov_b64 exec, -1')

def bf16_round(dst, src):
    e('v_cvt_pk_bf16_f32 v%d, v%d, v%d' % (dst, src, src))
    e('v_and_b32 v%d, 0xffff0000, v%d' % (dst, dst))

def row_allreduce(op, v):
    for sh in (8, 4, 2, 1):
        e('s_nop 1')
        e('v_%s_f32_dpp v%d, v%d, v%d row_ror:%d row_mask:0xf bank_mask:0xf' % (op, v, v, v, sh))

def xrow_allreduce(op, v, t):
    e('v_mov_b32 v%d, v%d' % (t, v))
    e('s_nop 1')
    e('v_permlane16_swap_b32 v%d, v%d' % (v, t))
    e('s_nop 1')
    e('v_%s_f32 v%d, v%d, v%d' % (op, v, v, t))
    e('v_mov_b32 v%d, v%d' % (t, v))
    e('s_nop 1')
    e('v_permlane32_swap_b32 v%d, v%d' % (v, t))
    e('s_nop 1')
    e('v_%s_f32 v%d, v%d, v%d' % (op, v, v, t))

def addtag(regs4):
    for k, rg in enumerate(regs4):
        e('v_bfi_b32 v%d, v%d, s%d, v%d' % (rg, VFF, S_TG + (k & 3), rg))

def check_tags(quads, vbad, vt):
    first = True
    for q in quads:
        for k in (0, 2):
            if first:
                e('v_xor_b32 v%d, s%d, v%d' % (vbad, S_TG + k, q + k))
                e('v_xor_b32 v%d, s%d, v%d' % (vt, S_TG + k + 1, q + k + 1))
                e('v_or_b32 v%d, v%d, v%d' % (vbad, vbad, vt))
                first = False
            else:
                e('v_xor_b32 v%d, s%d, v%d' % (vt, S_TG + k, q + k))
                e('v_xor_b32 v%d, s%d, v%d' % (vt + 1, S_TG + k + 1, q + k + 1))
                e('v_or3_b32 v%d, v%d, v%d, v%d' % (vbad, vbad, vt, vt + 1))
    e('v_and_b32 v%d, 0xff, v%d' % (vbad, vbad))
    e('v_cmp_ne_u32 vcc, 0, v%d' % vbad)

def spin_loop(body_issue, tagregs, vbad, vt, sleep=2):
    top = uid('L_spin'); done = uid('L_spun')
    e('s_mov_b32 s%d, 0' % S_SPIN)
    lab(top)
    body_issue()
    e('s_waitcnt vmcnt(0)')
    check_tags(tagregs, vbad, vt)
    e('s_nop 1')
    e('s_cbranch_vccz %s' % done)
    e('s_add_u32 s%d, s%d, 1' % (S_SPIN, S_SPIN))
    e('s_cmp_ge_u32 s%d, %d' % (S_SPIN, SPIN_MAX))
    e('s_cbranch_scc1 %s' % done)
    e('s_sleep %d' % sleep)
    e('s_branch %s' % top)
    lab(done)

def untag(quads):
    for q in quads:
        for k in range(4):
            e('v_and_b32 v%d, 0xffffff00, v%d' % (q + k, q + k))

def lds_flag_wait(off):
    top = uid('L_fl'); done = uid('L_fld')
    e('s_mov_b32 s%d, 0' % S_SPIN)
    e('v_mov_b32 v4, %d' % off)
    lab(top)
    e('ds_read_b32 v5, v4')
    e('s_waitcnt lgkmcnt(0)')
    e('v_readfirstlane_b32 s44, v5')
    e('s_cmp_lg_u32 s44, 0')
    e('s_cbranch_scc1 %s' % done)
    e('s_add_u32 s%d, s%d, 1' % (S_SPIN, S_SPIN))
    e('s_cmp_ge_u32 s%d, %d' % (S_SPIN, SPIN_MAX * 20))
    e('s_cbranch_scc1 %s' % done)
    e('s_sleep 1')
    e('s_branch %s' % top)
    lab(done)

def lds_flag_set(off):
    e('s_waitcnt lgkmcnt(0)')
    e('v_mov_b32 v4, %d' % off)
    e('v_mov_b32 v5, 1')
    e('ds_write_b32 v4, v5')

def sigmoid_mul(dst, x, arg, t):
    e('v_exp_f32 v%d, v%d' % (t, arg))
    e('s_nop 0')
    e('v_add_f32 v%d, 1.0, v%d' % (t, t))
    e('v_rcp_f32 v%d, v%d' % (t, t))
    e('s_nop 0')
    e('v_mul_f32 v%d, v%d, v%d' % (dst, x, t))

def red_lane_map(s_rhi_cp, vlds, vglb):
    e('v_and_b32 v10, 3, v1')
    e('v_bfe_u32 v11, v1, 2, 3')
    e('s_and_b32 s45, %s, 1' % s_rhi_cp)
    e('s_lshl_b32 s45, s45, 3')
    e('v_add_u32 v11, s45, v11')
    e('v_lshrrev_b32 v9, 5, v1')
    e('s_and_b32 s45, %s, 2' % s_rhi_cp)
    e('v_add_u32 v9, s45, v9')
    e('v_lshlrev_b32 v%d, 4, v11' % vlds)
    e('v_lshl_add_u32 v%d, v10, 2, v%d' % (vlds, vlds))
    e('v_lshl_add_u32 v%d, v9, 9, v%d' % (vlds, vlds))
    e('v_lshlrev_b32 v%d, 6, v11' % vglb)
    e('v_lshl_add_u32 v%d, v9, 4, v%d' % (vglb, vglb))

def late_loads():
    e('s_cmp_ge_u32 s%d, 4' % S_WAVE)
    e('s_cselect_b32 s44, 1, 0')
    e('s_cmp_lt_u32 s2, 224')
    e('s_cselect_b32 s45, 1, 0')
    e('s_and_b32 s57, s44, s45')
    e('s_cmp_lg_u32 s57, 0')
    e('s_cselect_b64 exec, -1, 0')
    load_block(T2, S_WDB, 2048, 5)
    e('s_cmp_ge_u32 s2, 128')
    e('s_cselect_b64 exec, -1, 0')
    load_block(T1, S_T1, 2048, 4)
    e('s_mov_b64 exec, -1')

e('s_cmp_ge_u32 s2, 256')
e('s_cbranch_scc1 L_end')
stamp(0)
e('s_load_dwordx16 s[4:19], s[0:1], 0')
e('s_load_dwordx8 s[20:27], s[0:1], 64')
e('v_and_b32 v1, 63, v0')
e('v_lshrrev_b32 v2, 4, v1')
e('v_and_b32 v3, 15, v1')
e('v_lshrrev_b32 v4, 6, v0')
e('s_mov_b32 s%d, 0x05040100' % S_SEL0)
e('v_readfirstlane_b32 s%d, v4' % S_WAVE)
e('s_mov_b32 s%d, 0x07060302' % S_SEL1)
e('s_waitcnt lgkmcnt(0)')

if OPT['pref']:
    cmt('---- code prefetch into L2 (wave 7 of the first 16 WGs)')
    e('s_cmp_lg_u32 s%d, 7' % S_WAVE)
    e('s_cbranch_scc1 L_nopref')
    e('s_cmp_ge_u32 s2, 16')
    e('s_cbranch_scc1 L_nopref')
    e('s_getpc_b64 s[44:45]')
    e('v_lshlrev_b32 v4, 4, v1')
    e('PREFETCH_PLACEHOLDER')
    lab('L_nopref')

e('s_or_b32 s44, s2, s%d' % S_WAVE)
e('s_cmp_lg_u32 s44, 0')
e('s_cbranch_scc1 L_nononce')
e('s_memrealtime s[44:45]')
e('s_waitcnt lgkmcnt(0)')
e('s_or_b32 s44, s44, 1')
e('v_mov_b32 v4, s44')
e('v_mov_b32 v5, 0')
e('s_mov_b64 exec, 1')
e('global_store_dword v5, v4, %s sc1' % sr(S_DBG))
e('s_mov_b64 exec, -1')
lab('L_nononce')

e('s_sub_u32 s58, s%d, 1' % S_WAVE)
e('s_cmp_ge_u32 s58, 4')
e('s_cbranch_scc1 L_nox')
e('s_lshl_b32 s44, s58, 11')
e('v_lshlrev_b32 v4, 4, v1')
e('v_add_u32 v4, s44, v4')
e('global_load_dwordx4 %s, v4, %s' % (vr(TMP), sr(S_X)))
e('global_load_dwordx4 %s, v4, %s offset:1024' % (vr(TMP + 4), sr(S_X)))
lab('L_nox')

e('s_cmp_ge_u32 s2, 128')
e('s_cbranch_scc1 L_t1wo')
e('s_lshr_b32 s44, s2, 5')
e('s_lshl_b32 s44, s44, 8')
e('s_lshl_b32 s45, s%d, 5' % S_WAVE)
e('s_add_u32 s44, s44, s45')
e('s_lshl_b32 s46, s44, 13')
e('s_and_b32 s45, s2, 31')
e('s_lshl_b32 s45, s45, 8')
e('s_add_u32 s46, s46, s45')
add64(S_T1, S_WQ, 46)
e('s_mov_b32 s%d, 8192' % S_RS1)
e('s_mov_b32 s47, s44')
e('s_branch L_t1done')
lab('L_t1wo')
e('s_sub_u32 s44, s2, 128')
e('s_lshr_b32 s45, s44, 1')
e('s_lshl_b32 s45, s45, 6')
e('s_lshr_b32 s46, s%d, 2' % S_WAVE)
e('s_lshl_b32 s46, s46, 5')
e('s_add_u32 s45, s45, s46')
e('s_lshl_b32 s45, s45, 11')
e('s_and_b32 s46, s44, 1')
e('s_lshl_b32 s46, s46, 10')
e('s_add_u32 s45, s45, s46')
e('s_and_b32 s46, s%d, 3' % S_WAVE)
e('s_lshl_b32 s46, s46, 8')
e('s_add_u32 s45, s45, s46')
add64(S_T1, S_WO, 45)
e('s_mov_b32 s%d, 2048' % S_RS1)
e('s_mov_b32 s47, 0')
lab('L_t1done')
e('s_cmp_ge_u32 s2, 112')
e('s_cselect_b32 s48, 1, 0')
e('s_mul_i32 s44, s48, 112')
e('s_sub_u32 s44, s2, s44')
e('s_mul_i32 s45, s44, 2341')
e('s_lshr_b32 s49, s45, 16')
e('s_mul_i32 s45, s49, 28')
e('s_sub_u32 s50, s44, s45')
e('s_lshl_b32 s44, s49, 8')
e('s_lshl_b32 s45, s%d, 5' % S_WAVE)
e('s_add_u32 s51, s44, s45')
e('s_mul_i32 s44, s51, 7168')
e('s_lshl_b32 s45, s50, 8')
e('s_add_u32 s44, s44, s45')
e('s_cmp_eq_u32 s48, 0')
e('s_cselect_b32 s52, s%d, s%d' % (S_WG, S_WU))
e('s_cselect_b32 s53, s%d, s%d' % (S_WG + 1, S_WU + 1))
add64(S_T2, 52, 44)
e('s_lshl_b32 s44, s2, 17')
e('s_lshl_b32 s45, s%d, 14' % S_WAVE)
e('s_add_u32 s44, s44, s45')
add64(S_KB, S_K, 44)
add64(S_VB, S_V, 44)
e('s_lshr_b32 s44, s2, 2')
e('s_lshl_b32 s44, s44, 6')
e('s_lshr_b32 s45, s%d, 1' % S_WAVE)
e('s_and_b32 s45, s45, 1')
e('s_lshl_b32 s45, s45, 5')
e('s_add_u32 s44, s44, s45')
e('s_lshl_b32 s44, s44, 11')
e('s_and_b32 s45, s2, 3')
e('s_lshl_b32 s45, s45, 9')
e('s_add_u32 s44, s44, s45')
e('s_and_b32 s45, s%d, 1' % S_WAVE)
e('s_lshl_b32 s45, s45, 8')
e('s_add_u32 s44, s44, s45')
add64(S_WDB, S_WD, 44)

e('s_cmp_ge_u32 s58, 4')
e('s_cbranch_scc1 L_noln')
e('s_waitcnt vmcnt(0)')
X = TMP + 8
for i in range(8):
    e('v_lshlrev_b32 v%d, 16, v%d' % (X + 2 * i, TMP + i))
    e('v_and_b32 v%d, 0xffff0000, v%d' % (X + 2 * i + 1, TMP + i))
e('v_add_f32 v4, v%d, v%d' % (X, X + 1))
for i in range(2, 16):
    e('v_add_f32 v4, v4, v%d' % (X + i))
row_allreduce('add', 4)
xrow_allreduce('add', 4, 5)
e('v_mul_f32 v4, 0x3a800000, v4')
e('v_sub_f32 v5, v%d, v4' % X)
e('v_mul_f32 v6, v5, v5')
for i in range(1, 16):
    e('v_sub_f32 v5, v%d, v4' % (X + i))
    e('v_fmac_f32 v6, v5, v5')
row_allreduce('add', 6)
xrow_allreduce('add', 6, 5)
e('v_mul_f32 v6, 0x3a800000, v6')
bf16_round(4, 4)
bf16_round(6, 6)
e('v_add_f32 v6, %s, v6' % f32(1e-5))
bf16_round(6, 6)
e('v_sqrt_f32 v6, v6')
e('s_nop 0')
bf16_round(6, 6)
e('v_rcp_f32 v7, v6')
e('s_nop 0')
for i in range(16):
    e('v_sub_f32 v5, v%d, v4' % (X + i))
    bf16_round(5, 5)
    e('v_mul_f32 v8, v5, v7')
    e('v_fma_f32 v9, -v8, v6, v5')
    e('v_fma_f32 v%d, v9, v7, v8' % (X + i))
for i in range(8):
    e('v_cvt_pk_bf16_f32 v%d, v%d, v%d' % (TMP + i, X + 2 * i, X + 2 * i + 1))
e('s_lshl_b32 s44, s58, 11')
e('v_lshlrev_b32 v4, 4, v1')
e('v_add_u32 v4, s44, v4')
e('ds_write_b128 v4, %s offset:%d' % (vr(TMP), XN))
e('ds_write_b128 v4, %s offset:%d' % (vr(TMP + 4), XN + 1024))
lab('L_noln')

e('s_cmp_lt_u32 s2, 128')
e('s_cselect_b64 exec, -1, 0')
load_block(T1, S_T1, 's%d' % S_RS1, 4)
e('s_cmp_lt_u32 s2, 224')
e('s_cselect_b64 exec, -1, 0')
load_block(T2, S_T2, 7168, 5)
e('s_cmp_ge_u32 s%d, 2' % S_WAVE)
e('s_cselect_b64 exec, -1, 0')
load_K(6, 0, NKE)
e('s_mov_b64 exec, -1')

e('s_cmp_lg_u32 s%d, 0' % S_WAVE)
e('s_cbranch_scc1 L_noclr')
e('v_mov_b32 v4, %d' % NONCE)
e('v_mov_b32 v6, 0')
e('v_mov_b32 v7, 0')
e('ds_write_b64 v4, v[6:7] offset:8')
e('ds_write_b64 v4, v[6:7] offset:16')
lab('L_noclr')
stamp(1)
e('s_waitcnt lgkmcnt(0)')
e('s_barrier')
stamp(2)

e('v_and_b32 v4, 3, v3')
e('v_lshlrev_b32 v4, 11, v4')
e('v_lshl_add_u32 v4, v2, 4, v4')
e('s_lshl_b32 s44, s%d, 11' % S_WAVE)
e('v_lshlrev_b32 v6, 5, v3')
e('v_add_u32 v6, s44, v6')
e('s_cmp_ge_u32 s2, 128')
e('s_cbranch_scc1 L_noq')
e('s_lshl_b32 s44, s47, 1')
e('v_add_u32 v5, s44, v4')
e('ds_read_b128 %s, v5 offset:%d' % (vr(AF), XN))
e('s_waitcnt vmcnt(%d) lgkmcnt(0)' % (8 + NKE))
gemv_block(T1, AF, VV, False)
e('v_add_u32 v7, %d, v6' % P1)
write_part(VV, False, 7, '0xffff', 256)
lab('L_noq')
e('s_cmp_ge_u32 s2, 224')
e('s_cbranch_scc1 L_nogu')
e('s_lshl_b32 s44, s51, 1')
e('v_add_u32 v5, s44, v4')
e('ds_read_b128 %s, v5 offset:%d' % (vr(AF), XN))
e('s_waitcnt vmcnt(%d) lgkmcnt(0)' % NKE)
gemv_block(T2, AF, VV + 32, False)
e('v_add_u32 v7, %d, v6' % P2)
write_part(VV + 32, False, 7, '0xffff', 256)
lab('L_nogu')

e('s_cmp_lg_u32 s%d, 0' % S_WAVE)
e('s_cbranch_scc1 L_nononce2')
e('s_mov_b32 s%d, 0' % S_SPIN)
e('v_mov_b32 v5, 0')
lab('L_noncepoll')
e('global_load_dword v4, v5, %s sc1' % sr(S_DBG))
e('s_waitcnt vmcnt(0)')
e('v_readfirstlane_b32 s44, v4')
e('s_cmp_lg_u32 s44, 0')
e('s_cbranch_scc1 L_noncegot')
e('s_add_u32 s%d, s%d, 1' % (S_SPIN, S_SPIN))
e('s_cmp_ge_u32 s%d, %d' % (S_SPIN, SPIN_MAX))
e('s_cbranch_scc1 L_noncegot')
e('s_sleep 1')
e('s_branch L_noncepoll')
lab('L_noncegot')
e('v_mov_b32 v5, %d' % NONCE)
e('ds_write_b32 v5, v4')
lab('L_nononce2')
stamp(3)
e('s_waitcnt lgkmcnt(0)')
e('s_barrier')
e('v_mov_b32 v5, %d' % NONCE)
e('ds_read_b32 v4, v5')
stamp(4)

e('v_mov_b32 v%d, 0xff' % VFF)
e('s_waitcnt lgkmcnt(0)')
e('v_readfirstlane_b32 s%d, v4' % S_TAG)
e('s_nop 3')
e('s_and_b32 s%d, s%d, 0xff' % (S_TG, S_TAG))
e('s_bfe_u32 s%d, s%d, 0x80008' % (S_TG + 1, S_TAG))
e('s_bfe_u32 s%d, s%d, 0x80010' % (S_TG + 2, S_TAG))
e('s_lshr_b32 s%d, s%d, 24' % (S_TG + 3, S_TAG))
e('s_cmp_lt_u32 s%d, 4' % S_WAVE)
e('s_cbranch_scc1 L_pubdone')
e('s_and_b32 s44, s%d, 1' % S_WAVE)
e('s_lshl_b32 s44, s44, 1')
e('v_lshrrev_b32 v6, 5, v1')
e('v_add_u32 v6, s44, v6')
e('v_and_b32 v7, 31, v1')
e('v_lshlrev_b32 v7, 4, v7')
e('s_cmp_lt_u32 s%d, 6' % S_WAVE)
e('s_cbranch_scc0 L_pubgu')
e('s_cmp_ge_u32 s2, 128')
e('s_cbranch_scc1 L_pubdone')
e('s_mov_b32 s45, %d' % P1)
e('s_lshr_b32 s46, s2, 5')
e('s_lshl_b32 s46, s46, 16')
e('s_and_b32 s54, s2, 31')
e('s_lshl_b32 s54, s54, 9')
e('s_add_u32 s46, s46, s54')
e('s_add_u32 s46, s46, %d' % QP)
e('s_mov_b32 s55, 16384')
e('s_branch L_pubgo')
lab('L_pubgu')
e('s_cmp_ge_u32 s2, 224')
e('s_cbranch_scc1 L_pubdone')
e('s_mov_b32 s45, %d' % P2)
e('s_lshl_b32 s46, s48, 2')
e('s_add_u32 s46, s46, s49')
e('s_mul_i32 s46, s46, %d' % (4 * 14336))
e('s_lshl_b32 s54, s50, 9')
e('s_add_u32 s46, s46, s54')
e('s_add_u32 s46, s46, %d' % GP)
e('s_mov_b32 s55, 14336')
lab('L_pubgo')
e('v_lshl_add_u32 v4, v6, 9, v7')
e('v_add_u32 v4, s45, v4')
for v in range(8):
    e('ds_read_b128 %s, v4 offset:%d' % (vr(TMP + 4 * v), v * 2048))
e('v_mul_u32_u24 v5, s55, v6')
e('v_add3_u32 v5, v5, v7, s46')
e('s_waitcnt lgkmcnt(0)')
for k in range(4):
    e('v_add_f32 v%d, v%d, v%d' % (8 + k, TMP + k, TMP + 4 + k))
for v in range(2, 8):
    for k in range(4):
        e('v_add_f32 v%d, v%d, v%d' % (8 + k, 8 + k, TMP + 4 * v + k))
addtag([8, 9, 10, 11])
e('global_store_dwordx4 v5, v[8:11], %s sc1' % sr(S_WS))
lab('L_pubdone')

e('s_cmp_ge_u32 s%d, 2' % S_WAVE)
e('s_cbranch_scc1 L_bulk')
THR[0] = OPT['thrg']
load_K(6, 0, 16)
load_V(6)
THR[0] = 0
e('s_cmp_eq_u32 s%d, 1' % S_WAVE)
e('s_cbranch_scc1 L_hgather')
e('s_lshr_b32 s44, s2, 4')
e('s_lshl_b32 s44, s44, 12')
e('s_add_u32 s44, s44, %d' % QP)
e('v_lshlrev_b32 v4, 4, v1')
e('v_add_u32 v4, s44, v4')
def _q():
    for ks in range(4):
        e('v_add_u32 v5, %d, v4' % (ks * 65536))
        for i in range(4):
            e('global_load_dwordx4 %s, v5, %s offset:%d sc1' % (vr(T1 + 16 * ks + 4 * i), sr(S_WS), i * 1024))
spin_loop(_q, [T1 + 4 * i for i in range(16)], 8, 10, sleep=4)
untag([T1 + 4 * i for i in range(16)])
e('v_lshrrev_b32 v5, 5, v1')
e('v_mul_u32_u24 v5, %d, v5' % QLS)
e('v_and_b32 v6, 31, v1')
e('v_lshl_add_u32 v5, v6, 3, v5')
for i in range(4):
    for k in range(4):
        d = TMP + 4 * i + k
        e('v_add_f32 v%d, v%d, v%d' % (d, T1 + 4 * i + k, T1 + 16 + 4 * i + k))
        e('v_add_f32 v%d, v%d, v%d' % (d, d, T1 + 32 + 4 * i + k))
        e('v_add_f32 v%d, v%d, v%d' % (d, d, T1 + 48 + 4 * i + k))
    e('v_cvt_pk_bf16_f32 v6, v%d, v%d' % (TMP + 4 * i, TMP + 4 * i + 1))
    e('v_cvt_pk_bf16_f32 v7, v%d, v%d' % (TMP + 4 * i + 2, TMP + 4 * i + 3))
    e('ds_write_b64 v5, v[6:7] offset:%d' % (QL + 2 * QLS * i))
lds_flag_set(NONCE + 8)
stamp(5)
e('s_branch L_late_ld')

lab('L_hgather')
e('s_cmp_ge_u32 s2, 224')
e('s_cbranch_scc1 L_late_ld')
e('s_lshr_b32 s44, s2, 2')
e('s_lshl_b32 s44, s44, 8')
e('s_add_u32 s44, s44, %d' % GP)
e('v_mul_u32_u24 v4, 14336, v2')
e('v_lshl_add_u32 v4, v3, 4, v4')
e('v_add_u32 v4, s44, v4')
def _h():
    for i in range(8):
        e('v_add_u32 v5, %d, v4' % ((((i & 1) * 4 + (i >> 1)) * 4) * 14336))
        e('global_load_dwordx4 %s, v5, %s sc1' % (vr(T1 + 4 * i), sr(S_WS)))
spin_loop(_h, [T1 + 4 * i for i in range(8)], 8, 10, sleep=4)
untag([T1 + 4 * i for i in range(8)])
for m in range(2):
    for k in range(4):
        d = TMP + 4 * m + k
        e('v_add_f32 v%d, v%d, v%d' % (d, T1 + 4 * m + k, T1 + 8 + 4 * m + k))
        e('v_add_f32 v%d, v%d, v%d' % (d, d, T1 + 16 + 4 * m + k))
        e('v_add_f32 v%d, v%d, v%d' % (d, d, T1 + 24 + 4 * m + k))
        bf16_round(d, d)
for k in range(4):
    g_ = TMP + k; u_ = TMP + 4 + k
    e('v_mul_f32 v4, v%d, v%d' % (g_, g_))
    e('v_mul_f32 v4, v4, v%d' % g_)
    e('v_mov_b32 v5, %s' % f32(0.044715))
    e('v_fma_f32 v4, v4, v5, v%d' % g_)
    e('v_mul_f32 v4, %s, v4' % f32(-2.0 * 0.7978845608028654 * 1.4426950408889634))
    sigmoid_mul(6, g_, 4, 5)
    bf16_round(6, 6)
    e('v_mul_f32 v%d, v6, v%d' % (g_, u_))
e('v_lshlrev_b32 v5, 3, v1')
e('v_cvt_pk_bf16_f32 v6, v%d, v%d' % (TMP, TMP + 1))
e('v_cvt_pk_bf16_f32 v7, v%d, v%d' % (TMP + 2, TMP + 3))
e('ds_write_b64 v5, v[6:7] offset:%d' % HL)
lds_flag_set(NONCE + 12)
stamp(5)
e('s_branch L_late_ld')

lab('L_bulk')
THR[0] = OPT['thr']
load_K(6, NKE, 16)
load_V(6)
lab('L_late_ld')
if not OPT['late']:
    late_loads()
THR[0] = 0
stamp(6)
NKR = 16 - NKE

lds_flag_wait(NONCE + 8)
stamp(7)
QF = TMP
SV = TMP + 16
e('v_and_b32 v4, 7, v3')
e('v_mul_u32_u24 v4, %d, v4' % QLS)
e('v_lshl_add_u32 v4, v2, 4, v4')
for t in range(4):
    e('ds_read_b128 %s, v4 offset:%d' % (vr(QF + 4 * t), QL + 64 * t))
LX = 0 if OPT['late'] else 16
e('s_waitcnt vmcnt(%d) lgkmcnt(0)' % (16 + LX))
stamp(8)
for T in range(4):
    for t in range(4):
        e('v_mfma_f32_16x16x32_bf16 %s, %s, %s, %s' % (vr(SV + 4 * T), ar(16 * T + 4 * t), vr(QF + 4 * t), '0' if t == 0 else vr(SV + 4 * T)))
e('s_nop 7')
e('s_mov_b32 s44, %s' % f32(128 ** -0.5))
for i in range(0, 16, 2):
    e('v_cvt_pk_bf16_f32 v4, v%d, v%d' % (SV + i, SV + i + 1))
    e('v_lshlrev_b32 v5, 16, v4')
    e('v_and_b32 v6, 0xffff0000, v4')
    e('v_mul_f32 v5, s44, v5')
    e('v_mul_f32 v6, s44, v6')
    e('v_cvt_pk_bf16_f32 v4, v5, v6')
    e('v_lshlrev_b32 v%d, 16, v4' % (SV + i))
    e('v_and_b32 v%d, 0xffff0000, v4' % (SV + i + 1))
e('v_max3_f32 v8, v%d, v%d, v%d' % (SV, SV + 1, SV + 2))
for i in range(3, 15, 2):
    e('v_max3_f32 v8, v8, v%d, v%d' % (SV + i, SV + i + 1))
e('v_max_f32 v8, v8, v%d' % (SV + 15))
xrow_allreduce('max', 8, 5)
e('s_mov_b32 s44, 0x%x' % LOG2E)
e('v_mul_f32 v5, s44, v8')
for i in range(16):
    e('v_fma_f32 v%d, v%d, s44, -v5' % (SV + i, SV + i))
    e('v_exp_f32 v%d, v%d' % (SV + i, SV + i))
e('s_nop 0')
e('v_add_f32 v9, v%d, v%d' % (SV, SV + 1))
for i in range(2, 16):
    e('v_add_f32 v9, v9, v%d' % (SV + i))
xrow_allreduce('add', 9, 5)
for i in range(8):
    e('v_cvt_pk_bf16_f32 v%d, v%d, v%d' % (PREG + i, SV + 2 * i, SV + 2 * i + 1))
e('s_waitcnt vmcnt(%d)' % (8 + LX))
gemv_block(VV, PREG, 0, True, first=True)
e('s_waitcnt vmcnt(%d)' % LX)
stamp(9)
gemv_block(VV + 32, PREG + 4, 0, True, first=False)
e('s_lshl_b32 s44, s%d, 6' % S_WAVE)
e('v_lshlrev_b32 v4, 3, v1')
e('v_add_u32 v4, s44, v4')
e('s_mov_b64 exec, 0xff')
e('ds_write_b64 v4, v[8:9] offset:%d' % MLL)
e('s_mov_b64 exec, -1')
e('s_lshl_b32 s44, s%d, 12' % S_WAVE)
e('s_add_u32 s44, s44, %d' % OV)
e('v_lshlrev_b32 v7, 5, v3')
e('v_lshl_add_u32 v7, v2, 11, v7')
e('v_add_u32 v7, s44, v7')
write_part(0, True, 7, '0xffffffff', 512)
e('s_waitcnt lgkmcnt(0)')
e('s_barrier')
stamp(10)

e('s_lshl_b32 s44, s%d, 3' % S_WAVE)
e('v_mov_b32 v4, s44')
for v in range(8):
    e('ds_read_b64 %s, v4 offset:%d' % (vr(TMP + 2 * v, 2), MLL + 64 * v))
e('s_lshl_b32 s44, s%d, 9' % S_WAVE)
e('s_add_u32 s44, s44, %d' % OV)
e('v_and_b32 v6, 31, v1')
e('v_lshlrev_b32 v6, 4, v6')
e('v_add_u32 v5, s44, v6')
for v in range(8):
    e('ds_read_b128 %s, v5 offset:%d' % (vr(VV + 4 * v), 4096 * v))
e('s_lshl_b32 s44, s2, 3')
e('s_add_u32 s44, s44, s%d' % S_WAVE)
e('s_lshl_b32 s44, s44, 9')
e('s_add_u32 s44, s44, %d' % OP)
e('v_add_u32 v%d, s44, v6' % (TMP + 16))
e('s_lshr_b32 s44, s2, 4')
e('s_lshl_b32 s44, s44, 3')
e('s_add_u32 s44, s44, s%d' % S_WAVE)
e('s_lshl_b32 s44, s44, 4')
e('s_and_b32 s45, s2, 15')
e('s_add_u32 s44, s44, s45')
e('s_lshl_b32 s44, s44, 4')
e('s_add_u32 s44, s44, %d' % ML)
e('v_mov_b32 v%d, s44' % (TMP + 17))
e('s_waitcnt lgkmcnt(0)')
e('v_max3_f32 v8, v%d, v%d, v%d' % (TMP, TMP + 2, TMP + 4))
e('v_max3_f32 v8, v8, v%d, v%d' % (TMP + 6, TMP + 8))
e('v_max3_f32 v8, v8, v%d, v%d' % (TMP + 10, TMP + 12))
e('v_max_f32 v8, v8, v%d' % (TMP + 14))
e('s_mov_b32 s46, 0x%x' % LOG2E)
for v in range(8):
    e('v_sub_f32 v%d, v%d, v8' % (TMP + 2 * v, TMP + 2 * v))
    e('v_mul_f32 v%d, s46, v%d' % (TMP + 2 * v, TMP + 2 * v))
    e('v_exp_f32 v%d, v%d' % (TMP + 2 * v, TMP + 2 * v))
e('s_nop 0')
for k in range(4):
    e('v_mul_f32 v%d, v%d, v%d' % (4 + k, TMP, VV + k))
e('v_mul_f32 v9, v%d, v%d' % (TMP, TMP + 1))
for v in range(1, 8):
    for k in range(4):
        e('v_fmac_f32 v%d, v%d, v%d' % (4 + k, TMP + 2 * v, VV + 4 * v + k))
    e('v_fmac_f32 v9, v%d, v%d' % (TMP + 2 * v, TMP + 2 * v + 1))
e('v_mov_b32 v10, v8')
e('v_mov_b32 v11, v9')
addtag([4, 5, 6, 7])
addtag([8, 9, 10, 11])
e('s_mov_b32 exec_hi, 0')
e('global_store_dwordx4 v%d, v[4:7], %s sc1' % (TMP + 16, sr(S_WS)))
e('s_mov_b64 exec, 1')
e('global_store_dwordx4 v%d, v[8:11], %s sc1' % (TMP + 17, sr(S_WS)))
e('s_mov_b64 exec, -1')
stamp(11)
if OPT['late']:
    late_loads()
e('s_cmp_eq_u32 s57, 0')
e('s_cbranch_scc1 L_nodown')
lds_flag_wait(NONCE + 12)
e('s_lshr_b32 s44, s%d, 1' % S_WAVE)
e('s_and_b32 s44, s44, 1')
e('s_lshl_b32 s44, s44, 6')
e('v_and_b32 v4, 3, v3')
e('v_lshlrev_b32 v4, 7, v4')
e('v_lshl_add_u32 v4, v2, 4, v4')
e('v_add_u32 v4, s44, v4')
e('ds_read_b128 %s, v4 offset:%d' % (vr(AF), HL))
e('s_waitcnt vmcnt(%d) lgkmcnt(0)' % (8 if OPT['late'] else 10))
gemv_block(T2, AF, T2, False)
e('s_sub_u32 s44, s%d, 4' % S_WAVE)
e('s_lshl_b32 s44, s44, 11')
e('s_add_u32 s44, s44, %d' % P3)
e('v_lshlrev_b32 v7, 5, v3')
e('v_add_u32 v7, s44, v7')
write_part(T2, False, 7, '0xffff', 256)
lab('L_nodown')

e('s_cmp_ge_u32 s2, 128')
e('s_cbranch_scc1 L_wo')
e('s_waitcnt lgkmcnt(0)')
e('s_barrier')
e('s_cmp_ge_u32 s2, 224')
e('s_cbranch_scc1 L_nodpubA')
e('s_cmp_ge_u32 s%d, 4' % S_WAVE)
e('s_cbranch_scc1 L_nodpubA')
e('s_lshl_b32 s46, s%d, 9' % S_WAVE)
e('v_lshrrev_b32 v6, 5, v1')
e('v_lshlrev_b32 v6, 11, v6')
e('v_and_b32 v7, 31, v1')
e('v_lshl_add_u32 v6, v7, 4, v6')
e('v_add_u32 v6, s46, v6')
e('ds_read_b128 v[12:15], v6 offset:%d' % P3)
e('ds_read_b128 v[16:19], v6 offset:%d' % (P3 + 4096))
e('s_lshl_b32 s44, s%d, 12' % S_WAVE)
e('s_lshr_b32 s45, s2, 2')
e('s_lshl_b32 s45, s45, 14')
e('s_add_u32 s44, s44, s45')
e('s_and_b32 s45, s2, 3')
e('s_lshl_b32 s45, s45, 10')
e('s_add_u32 s44, s44, s45')
e('s_add_u32 s44, s44, %d' % DP)
e('v_lshlrev_b32 v7, 4, v1')
e('v_add_u32 v7, s44, v7')
e('s_waitcnt lgkmcnt(0)')
for k in range(4):
    e('v_add_f32 v%d, v%d, v%d' % (12 + k, 12 + k, 16 + k))
addtag([12, 13, 14, 15])
e('global_store_dwordx4 v7, v[12:15], %s sc1' % sr(S_WS))
lab('L_nodpubA')
e('s_branch L_final')
lab('L_wo')
e('s_sub_u32 s44, s2, 128')
e('s_lshr_b32 s45, s44, 2')
e('s_lshr_b32 s46, s45, 3')
e('s_and_b32 s54, s45, 7')
e('s_lshr_b32 s55, s44, 1')
e('s_and_b32 s55, s55, 1')
e('s_lshl_b32 s56, s46, 16')
e('s_lshl_b32 s57, s54, 9')
e('s_add_u32 s56, s56, s57')
e('s_lshl_b32 s57, s55, 8')
e('s_add_u32 s56, s56, s57')
e('s_lshl_b32 s57, s%d, 5' % S_WAVE)
e('s_add_u32 s56, s56, s57')
e('s_add_u32 s56, s56, %d' % OP)
e('v_lshlrev_b32 v4, 18, v2')
e('v_lshlrev_b32 v5, 12, v3')
e('v_add3_u32 v4, v4, v5, s56')
e('s_lshl_b32 s56, s46, 11')
e('s_lshl_b32 s57, s54, 8')
e('s_add_u32 s56, s56, s57')
e('s_add_u32 s56, s56, %d' % ML)
e('v_lshlrev_b32 v5, 13, v2')
e('v_lshlrev_b32 v6, 4, v3')
e('v_add3_u32 v5, v5, v6, s56')
def _o():
    e('global_load_dwordx4 %s, v5, %s sc1' % (vr(VV + 8), sr(S_WS)))
    for i in range(2):
        e('global_load_dwordx4 %s, v4, %s offset:%d sc1' % (vr(VV + 4 * i), sr(S_WS), 16 * i))
spin_loop(_o, [VV, VV + 4, VV + 8], 8, 10, sleep=1)
stamp(12)
untag([VV, VV + 4, VV + 8])
e('v_mov_b32 v8, v%d' % (VV + 8))
row_allreduce('max', 8)
e('s_mov_b32 s44, 0x%x' % LOG2E)
e('v_sub_f32 v8, v%d, v8' % (VV + 8))
e('v_mul_f32 v8, s44, v8')
e('v_exp_f32 v8, v8')
e('s_nop 0')
e('v_mul_f32 v9, v8, v%d' % (VV + 9))
row_allreduce('add', 9)
e('v_rcp_f32 v10, v9')
e('s_nop 0')
e('v_fma_f32 v11, -v9, v10, 1.0')
e('v_fma_f32 v10, v11, v10, v10')
e('v_mul_f32 v8, v8, v10')
for i in range(8):
    e('v_mul_f32 v%d, v8, v%d' % (TMP + i, VV + i))
for sh in (8, 4, 2, 1):
    if sh == 8:
        e('s_nop 1')
    for i in range(8):
        e('v_add_f32_dpp v%d, v%d, v%d row_ror:%d row_mask:0xf bank_mask:0xf' % (TMP + i, TMP + i, TMP + i, sh))
for i in range(4):
    e('v_cvt_pk_bf16_f32 v%d, v%d, v%d' % (TMP + 8 + i, TMP + 2 * i, TMP + 2 * i + 1))
e('s_lshl_b32 s44, s%d, 4' % S_WAVE)
e('v_lshlrev_b32 v4, 7, v2')
e('v_add_u32 v4, s44, v4')
e('s_mov_b32 exec_lo, 0x00010001')
e('s_mov_b32 exec_hi, 0x00010001')
e('ds_write_b128 v4, %s offset:%d' % (vr(TMP + 8), OL))
e('s_mov_b64 exec, -1')
transpose_block(T1)
e('s_lshr_b32 s44, s%d, 2' % S_WAVE)
e('s_lshl_b32 s44, s44, 6')
e('v_and_b32 v4, 3, v3')
e('v_lshlrev_b32 v4, 7, v4')
e('v_lshl_add_u32 v4, v2, 4, v4')
e('v_add_u32 v4, s44, v4')
e('s_lshl_b32 s44, s%d, 11' % S_WAVE)
e('s_add_u32 s44, s44, %d' % P4)
e('v_lshlrev_b32 v7, 5, v3')
e('v_add_u32 v7, s44, v7')
e('s_waitcnt lgkmcnt(0)')
e('s_barrier')
stamp(13)
e('ds_read_b128 %s, v4 offset:%d' % (vr(AF), OL))
e('s_waitcnt lgkmcnt(0)')
for c in range(8):
    e('v_mfma_f32_16x16x32_bf16 %s, %s, %s, 0' % (ar(4 * c), vr(AF), vr(TMP + 4 * c)))
write_part(0, True, 7, '0xffff', 256)
e('s_and_b32 s44, s%d, 3' % S_WAVE)
e('s_lshr_b32 s45, s%d, 2' % S_WAVE)
e('s_lshl_b32 s46, s44, 9')
e('s_lshl_b32 s54, s45, 12')
e('s_add_u32 s46, s46, s54')
e('v_lshrrev_b32 v6, 5, v1')
e('v_lshlrev_b32 v6, 11, v6')
e('v_and_b32 v7, 31, v1')
e('v_lshl_add_u32 v6, v7, 4, v6')
e('v_add_u32 v6, s46, v6')
e('s_lshl_b32 s44, s44, 12')
e('s_lshl_b32 s45, s45, 10')
e('s_add_u32 s44, s44, s45')
e('s_sub_u32 s46, s2, 128')
e('s_lshr_b32 s45, s46, 1')
e('s_lshl_b32 s45, s45, 14')
e('s_add_u32 s44, s44, s45')
e('s_and_b32 s46, s46, 1')
e('s_lshl_b32 s46, s46, 11')
e('s_add_u32 s44, s44, s46')
e('s_add_u32 s44, s44, %d' % SP)
e('v_lshlrev_b32 v5, 4, v1')
e('v_add_u32 v5, s44, v5')
e('s_waitcnt lgkmcnt(0)')
e('s_barrier')
e('ds_read_b128 %s, v6 offset:%d' % (vr(TMP), P4))
e('ds_read_b128 %s, v6 offset:%d' % (vr(TMP + 4), P4 + 8192))
e('s_waitcnt lgkmcnt(0)')
for k in range(4):
    e('v_add_f32 v%d, v%d, v%d' % (8 + k, TMP + k, TMP + 4 + k))
addtag([8, 9, 10, 11])
e('global_store_dwordx4 v5, v[8:11], %s sc1' % sr(S_WS))
e('s_cmp_ge_u32 s2, 224')
e('s_cbranch_scc1 L_nodpubB')
e('s_cmp_ge_u32 s%d, 4' % S_WAVE)
e('s_cbranch_scc1 L_nodpubB')
e('s_lshl_b32 s46, s%d, 9' % S_WAVE)
e('v_lshrrev_b32 v6, 5, v1')
e('v_lshlrev_b32 v6, 11, v6')
e('v_and_b32 v7, 31, v1')
e('v_lshl_add_u32 v6, v7, 4, v6')
e('v_add_u32 v6, s46, v6')
e('ds_read_b128 v[12:15], v6 offset:%d' % P3)
e('ds_read_b128 v[16:19], v6 offset:%d' % (P3 + 4096))
e('s_lshl_b32 s44, s%d, 12' % S_WAVE)
e('s_lshr_b32 s45, s2, 2')
e('s_lshl_b32 s45, s45, 14')
e('s_add_u32 s44, s44, s45')
e('s_and_b32 s45, s2, 3')
e('s_lshl_b32 s45, s45, 10')
e('s_add_u32 s44, s44, s45')
e('s_add_u32 s44, s44, %d' % DP)
e('v_lshlrev_b32 v7, 4, v1')
e('v_add_u32 v7, s44, v7')
e('s_waitcnt lgkmcnt(0)')
for k in range(4):
    e('v_add_f32 v%d, v%d, v%d' % (12 + k, 12 + k, 16 + k))
addtag([12, 13, 14, 15])
e('global_store_dwordx4 v7, v[12:15], %s sc1' % sr(S_WS))
lab('L_nodpubB')
stamp(14)

lab('L_final')
e('s_cmp_lg_u32 s%d, 0' % S_WAVE)
e('s_cbranch_scc1 L_fin2')
e('s_lshr_b32 s44, s2, 6')
e('s_lshl_b32 s44, s44, 12')
e('s_and_b32 s45, s2, 63')
e('s_lshl_b32 s45, s45, 6')
e('s_add_u32 s44, s44, s45')
e('v_lshrrev_b32 v4, 2, v1')
e('v_lshlrev_b32 v4, 14, v4')
e('v_and_b32 v5, 3, v1')
e('v_lshlrev_b32 v5, 4, v5')
e('v_add3_u32 v4, v4, v5, s44')
e('s_lshl_b32 s45, s2, 5')
e('v_lshrrev_b32 v6, 1, v5')
e('v_add_u32 v6, s45, v6')
e('global_load_dwordx2 v[16:17], v6, %s' % sr(S_X))
for k in range(4):
    e('v_mov_b32 v%d, s%d' % (VV + 28 + k, S_TG + k))
def _f0():
    e('v_add_u32 v5, %d, v4' % (SP + 3 * 262144))
    e('global_load_dwordx4 %s, v5, %s sc1' % (vr(VV), sr(S_WS)))
spin_loop(_f0, [VV], 8, 10, sleep=1)
def _f():
    for i in range(4):
        e('v_add_u32 v5, %d, v4' % (SP + i * 262144))
        e('global_load_dwordx4 %s, v5, %s sc1' % (vr(VV + 4 * i), sr(S_WS)))
    for i in range(4):
        e('v_add_u32 v5, %d, v4' % (DP + i * 262144))
        if i == 3:
            e('s_mov_b32 exec_hi, 0')
        e('global_load_dwordx4 %s, v5, %s sc1' % (vr(VV + 16 + 4 * i), sr(S_WS)))
    e('s_mov_b64 exec, -1')
spin_loop(_f, [VV + 4 * i for i in range(8)], 8, 10, sleep=1)
untag([VV + 4 * i for i in range(8)])
for k in range(4):
    e('v_add_f32 v%d, v%d, v%d' % (8 + k, VV + k, VV + 4 + k))
    e('v_add_f32 v%d, v%d, v%d' % (12 + k, VV + 16 + k, VV + 20 + k))
for i in range(2, 4):
    for k in range(4):
        e('v_add_f32 v%d, v%d, v%d' % (8 + k, 8 + k, VV + 4 * i + k))
        e('v_add_f32 v%d, v%d, v%d' % (12 + k, 12 + k, VV + 16 + 4 * i + k))
for sh in (8, 4):
    e('s_nop 1')
    for rg in range(8, 16):
        e('v_add_f32_dpp v%d, v%d, v%d row_ror:%d row_mask:0xf bank_mask:0xf' % (rg, rg, rg, sh))
for rg in range(8, 16):
    xrow_allreduce('add', rg, 5)
e('s_mov_b32 s44, 0x%x' % (LOG2E | 0x80000000))
e('v_lshlrev_b32 v%d, 16, v16' % TMP)
e('v_and_b32 v%d, 0xffff0000, v16' % (TMP + 1))
e('v_lshlrev_b32 v%d, 16, v17' % (TMP + 2))
e('v_and_b32 v%d, 0xffff0000, v17' % (TMP + 3))
for k in range(4):
    s_ = 8 + k; d_ = 12 + k; x_ = TMP + k
    bf16_round(s_, s_)
    bf16_round(d_, d_)
    e('v_mul_f32 v4, s44, v%d' % d_)
    sigmoid_mul(5, d_, 4, 7)
    bf16_round(5, 5)
    e('v_mul_f32 v5, v%d, v5' % s_)
    bf16_round(5, 5)
    e('v_add_f32 v%d, v%d, v5' % (x_, x_))
e('v_cvt_pk_bf16_f32 v12, v%d, v%d' % (TMP, TMP + 1))
e('v_cvt_pk_bf16_f32 v13, v%d, v%d' % (TMP + 2, TMP + 3))
e('s_mov_b64 exec, 0xf')
e('global_store_dwordx2 v6, v[12:13], %s' % sr(S_OUT))
lab('L_fin2')
if OPT['stamps']:
    stamp(15)
    e('s_mov_b64 exec, 1')
    e('s_waitcnt lgkmcnt(0)')
    e('s_lshl_b32 s44, s2, 3')
    e('s_add_u32 s44, s44, s%d' % S_WAVE)
    e('s_lshl_b32 s44, s44, 6')
    e('s_add_u32 s44, s44, %d' % STAMPS)
    e('v_mov_b32 v5, s44')
    for i in range(16):
        e('v_mov_b32 v4, s%d' % (64 + 2 * i))
        e('global_store_dword v5, v4, %s offset:%d' % (sr(S_WS), 4 * i))
lab('L_end')
e('s_endpgm')

if OPT['pref']:
    import subprocess, re
    body = '\n'.join(x for x in L if 'PREFETCH_PLACEHOLDER' not in x)
    open('_sz.s', 'w').write('.amdgcn_target "amdgcn-amd-amdhsa--gfx950"\n.text\n' + body + '\n')
    subprocess.check_call(['clang', '-x', 'assembler', '-target', 'amdgcn-amd-amdhsa', '-mcpu=gfx950', '-c', '_sz.s', '-o', '_sz.o'])
    out = subprocess.check_output(['llvm-readelf', '-S', '_sz.o']).decode()
    tsz = int(re.search(r'\.text\s+PROGBITS\s+\S+\s+\S+\s+(\S+)', out).group(1), 16)
    nkb = (tsz - 128) // 1024
    print('code bytes', tsz, 'prefetch KB', nkb)
    pl = []
    for i in range(nkb):
        pl.append('    global_load_dwordx4 v[%d:%d], v4, s[44:45]' % (TMP + 28, TMP + 31))
        pl.append('    v_add_u32 v4, 1024, v4')
    idx = L.index('    PREFETCH_PLACEHOLDER')
    L[idx:idx + 1] = pl

hdr = open('cdna_kernels/%s.s.ref' % NAME).read().split('; Override')[0]
src = hdr
src += '; @launch grid=(256,1,1) block=(512,1,1) lds=%d\n' % LDS_BYTES
src += '.amdgcn_target "amdgcn-amd-amdhsa--gfx950"\n.text\n'
src += '.globl %s_kernel\n.p2align 8\n.type %s_kernel,@function\n%s_kernel:\n' % (NAME, NAME, NAME)
src += '\n'.join(L) + '\n'
src += '''.section .rodata,"a"
.p2align 6
.amdhsa_kernel %s_kernel
  .amdhsa_next_free_vgpr 252
  .amdhsa_next_free_sgpr 102
  .amdhsa_accum_offset %d
  .amdhsa_group_segment_fixed_size 0
  .amdhsa_kernarg_size 96
  .amdhsa_user_sgpr_count 2
  .amdhsa_user_sgpr_kernarg_segment_ptr 1
  .amdhsa_system_sgpr_workgroup_id_x 1
.end_amdhsa_kernel
''' % (NAME, NV)
open(OUT, 'w').write(src)
print('wrote', OUT, len(L), 'lines')
```

```python
import sys, struct
def f32(x):
    return '0x%08x' % struct.unpack('<I', struct.pack('<f', x))[0]

NAME = 'recurrent_scan__gqa_block_cached__glu_gated_geglu__decode'
OUT = 'cdna_kernels/%s.s' % NAME

OPT = dict(nt=1, stamps=0, nke=4, pref=1, thr=8, thrg=0, late=0, csync=0, dbg=0)
for a in sys.argv[1:]:
    if '=' in a:
        k, v = a.split('=')
        if k == 'out':
            OUT = v
        else:
            OPT[k] = int(v)

L = []
def e(s):
    L.append('    ' + s)
def lab(s):
    L.append(s + ':')
def cmt(s):
    L.append('    ; ' + s)
_uid = [0]
def uid(p):
    _uid[0] += 1
    return '%s_%d' % (p, _uid[0])

QP = 0x000000
GP = 0x080000
OP = 0x200000
ML = 0x400000
SP = 0x500000
DP = 0x700000
STAMPS = 0x1000000

XN = 0
NONCE = 8192
QL = 8448
QLS = 272
HL = 10752
OL = 11264
MLL = 11776
P1 = 12288
P2 = 28672
P3 = 45056
P4 = 53248
OV = 69632
LDS_BYTES = 102400

T1 = 24
T2 = 56
VV = 88
TMP = 152
NV = 188
PREG = 12
AF = 20
S_X, S_K, S_V, S_WQ, S_WO, S_WG, S_WU, S_WD, S_OUT, S_DBG, S_WS = 4, 6, 8, 10, 12, 16, 18, 20, 22, 24, 26
S_WAVE, S_TAG, S_SEL0, S_SEL1 = 28, 29, 30, 31
S_T1, S_T2, S_KB, S_VB, S_WDB = 32, 34, 36, 38, 40
S_RS1 = 42
S_SPIN = 62
S_TG = 96
VFF = 184
LOG2E = 0x3fb8aa3b
SPIN_MAX = 200000
NKE = OPT['nke']

NT = ' nt' if OPT['nt'] else ''

def stamp(i):
    if OPT['stamps'] or OPT['dbg']:
        e('s_memrealtime s[%d:%d]' % (64 + 2 * i, 65 + 2 * i))

def vr(b, n=4):
    return 'v[%d:%d]' % (b, b + n - 1)
def ar(b, n=4):
    return 'a[%d:%d]' % (b, b + n - 1)
def sr(b, n=2):
    return 's[%d:%d]' % (b, b + n - 1)

def add64(dst, base, off_sreg):
    e('s_add_u32 s%d, s%d, s%d' % (dst, base, off_sreg))
    e('s_addc_u32 s%d, s%d, 0' % (dst + 1, base + 1))

THR = [0]
def thr():
    if THR[0]:
        e('s_waitcnt vmcnt(%d)' % (THR[0] - 1))

def load_block(dst, sbase, rs, vtmp):
    if isinstance(rs, int):
        e('v_mul_u32_u24 v%d, %d, v2' % (vtmp, 8 * rs))
    else:
        e('s_lshl_b32 s59, %s, 3' % rs)
        e('v_mul_u32_u24 v%d, s59, v2' % vtmp)
    e('v_lshl_add_u32 v%d, v3, 4, v%d' % (vtmp, vtmp))
    for i in range(8):
        thr()
        e('global_load_dwordx4 %s, v%d, %s%s' % (vr(dst + 4 * i), vtmp, sr(sbase), NT))
        if i < 7:
            e('v_add_u32 v%d, %s, v%d' % (vtmp, str(rs), vtmp))

def load_K(vtmp, lo, hi):
    if lo >= hi:
        return
    e('v_lshlrev_b32 v%d, 8, v3' % vtmp)
    e('v_lshl_add_u32 v%d, v2, 4, v%d' % (vtmp, vtmp))
    cur = 0
    for n in range(lo, hi):
        T, t = n >> 2, n & 3
        if T * 4096 != cur:
            e('v_add_u32 v%d, %d, v%d' % (vtmp, T * 4096 - cur, vtmp))
            cur = T * 4096
        thr()
        e('global_load_dwordx4 %s, v%d, %s offset:%d%s' % (ar(16 * T + 4 * t), vtmp, sr(S_KB), t * 64, NT))

def csync_inc():
    if OPT['csync']:
        e('v_mov_b32 v4, %d' % (NONCE + 16))
        e('v_mov_b32 v5, 1')
        e('s_mov_b64 exec, 1')
        e('ds_add_u32 v4, v5')
        e('s_mov_b64 exec, -1')

def load_V(vtmp):
    e('v_lshlrev_b32 v%d, 10, v2' % vtmp)
    e('v_lshl_add_u32 v%d, v3, 4, v%d' % (vtmp, vtmp))
    e('v_add_u32 v%d, 0x1000, v%d' % (vtmp, vtmp))
    for B in range(2):
        for j in range(8):
            off = (j >> 2) * 4096 - 4096 + (j & 3) * 256
            thr()
            e('global_load_dwordx4 %s, v%d, %s offset:%d%s' % (vr(VV + 32 * B + 4 * j), vtmp, sr(S_VB), off, NT))
        if B == 0:
            e('v_add_u32 v%d, 0x2000, v%d' % (vtmp, vtmp))

def transpose_block(T):
    for c in range(8):
        d = c >> 1
        sel = S_SEL0 if c % 2 == 0 else S_SEL1
        for jj in range(4):
            e('v_perm_b32 v%d, v%d, v%d, s%d' % (TMP + 4 * c + jj, T + 4 * (2 * jj + 1) + d, T + 4 * (2 * jj) + d, sel))

def gemv_block(T, A, acc, agpr, first=True):
    transpose_block(T)
    e('s_nop 1')
    f = ar if agpr else vr
    for c in range(8):
        e('v_mfma_f32_16x16x32_bf16 %s, %s, %s, %s' % (f(acc + 4 * c), vr(A), vr(TMP + 4 * c), '0' if first else f(acc + 4 * c)))

def write_part(acc, agpr, vaddr, nlanes_mask, cstride=None):
    e('s_nop 7')
    for i in range(4):
        for c in range(8):
            if agpr:
                e('v_accvgpr_read_b32 v%d, a%d' % (TMP + 8 * i + c, acc + 4 * c + i))
            else:
                e('v_mov_b32 v%d, v%d' % (TMP + 8 * i + c, acc + 4 * c + i))
    e('s_mov_b32 exec_lo, %s' % nlanes_mask)
    e('s_mov_b32 exec_hi, 0')
    for i in range(4):
        e('ds_write_b128 v%d, %s offset:%d' % (vaddr, vr(TMP + 8 * i), i * 512))
        e('ds_write_b128 v%d, %s offset:%d' % (vaddr, vr(TMP + 8 * i + 4), i * 512 + 16))
    e('s_mov_b64 exec, -1')

def bf16_round(dst, src):
    e('v_cvt_pk_bf16_f32 v%d, v%d, v%d' % (dst, src, src))
    e('v_and_b32 v%d, 0xffff0000, v%d' % (dst, dst))

def row_allreduce(op, v):
    for sh in (8, 4, 2, 1):
        e('s_nop 1')
        e('v_%s_f32_dpp v%d, v%d, v%d row_ror:%d row_mask:0xf bank_mask:0xf' % (op, v, v, v, sh))

def xrow_allreduce(op, v, t):
    e('v_mov_b32 v%d, v%d' % (t, v))
    e('s_nop 1')
    e('v_permlane16_swap_b32 v%d, v%d' % (v, t))
    e('s_nop 1')
    e('v_%s_f32 v%d, v%d, v%d' % (op, v, v, t))
    e('v_mov_b32 v%d, v%d' % (t, v))
    e('s_nop 1')
    e('v_permlane32_swap_b32 v%d, v%d' % (v, t))
    e('s_nop 1')
    e('v_%s_f32 v%d, v%d, v%d' % (op, v, v, t))

def addtag(regs4):
    for k, rg in enumerate(regs4):
        e('v_bfi_b32 v%d, v%d, s%d, v%d' % (rg, VFF, S_TG + (k & 3), rg))

def check_tags(quads, vbad, vt):
    first = True
    for q in quads:
        for k in (0, 2):
            if first:
                e('v_xor_b32 v%d, s%d, v%d' % (vbad, S_TG + k, q + k))
                e('v_xor_b32 v%d, s%d, v%d' % (vt, S_TG + k + 1, q + k + 1))
                e('v_or_b32 v%d, v%d, v%d' % (vbad, vbad, vt))
                first = False
            else:
                e('v_xor_b32 v%d, s%d, v%d' % (vt, S_TG + k, q + k))
                e('v_xor_b32 v%d, s%d, v%d' % (vt + 1, S_TG + k + 1, q + k + 1))
                e('v_or3_b32 v%d, v%d, v%d, v%d' % (vbad, vbad, vt, vt + 1))
    e('v_and_b32 v%d, 0xff, v%d' % (vbad, vbad))
    e('v_cmp_ne_u32 vcc, 0, v%d' % vbad)

def spin_loop(body_issue, tagregs, vbad, vt, sleep=2):
    top = uid('L_spin'); done = uid('L_spun')
    e('s_mov_b32 s%d, 0' % S_SPIN)
    lab(top)
    body_issue()
    e('s_waitcnt vmcnt(0)')
    check_tags(tagregs, vbad, vt)
    e('s_nop 1')
    e('s_cbranch_vccz %s' % done)
    e('s_add_u32 s%d, s%d, 1' % (S_SPIN, S_SPIN))
    e('s_cmp_ge_u32 s%d, %d' % (S_SPIN, SPIN_MAX))
    e('s_cbranch_scc1 %s' % done)
    e('s_sleep %d' % sleep)
    e('s_branch %s' % top)
    lab(done)

def untag(quads):
    for q in quads:
        for k in range(4):
            e('v_and_b32 v%d, 0xffffff00, v%d' % (q + k, q + k))

def lds_flag_wait(off):
    top = uid('L_fl'); done = uid('L_fld')
    e('s_mov_b32 s%d, 0' % S_SPIN)
    e('v_mov_b32 v4, %d' % off)
    lab(top)
    e('ds_read_b32 v5, v4')
    e('s_waitcnt lgkmcnt(0)')
    e('v_readfirstlane_b32 s44, v5')
    e('s_cmp_lg_u32 s44, 0')
    e('s_cbranch_scc1 %s' % done)
    e('s_add_u32 s%d, s%d, 1' % (S_SPIN, S_SPIN))
    e('s_cmp_ge_u32 s%d, %d' % (S_SPIN, SPIN_MAX * 20))
    e('s_cbranch_scc1 %s' % done)
    e('s_sleep 1')
    e('s_branch %s' % top)
    lab(done)

def lds_flag_set(off):
    e('s_waitcnt lgkmcnt(0)')
    e('v_mov_b32 v4, %d' % off)
    e('v_mov_b32 v5, 1')
    e('ds_write_b32 v4, v5')

def sigmoid_mul(dst, x, arg, t):
    e('v_exp_f32 v%d, v%d' % (t, arg))
    e('s_nop 0')
    e('v_add_f32 v%d, 1.0, v%d' % (t, t))
    e('v_rcp_f32 v%d, v%d' % (t, t))
    e('s_nop 0')
    e('v_mul_f32 v%d, v%d, v%d' % (dst, x, t))

def red_lane_map(s_rhi_cp, vlds, vglb):
    e('v_and_b32 v10, 3, v1')
    e('v_bfe_u32 v11, v1, 2, 3')
    e('s_and_b32 s45, %s, 1' % s_rhi_cp)
    e('s_lshl_b32 s45, s45, 3')
    e('v_add_u32 v11, s45, v11')
    e('v_lshrrev_b32 v9, 5, v1')
    e('s_and_b32 s45, %s, 2' % s_rhi_cp)
    e('v_add_u32 v9, s45, v9')
    e('v_lshlrev_b32 v%d, 4, v11' % vlds)
    e('v_lshl_add_u32 v%d, v10, 2, v%d' % (vlds, vlds))
    e('v_lshl_add_u32 v%d, v9, 9, v%d' % (vlds, vlds))
    e('v_lshlrev_b32 v%d, 6, v11' % vglb)
    e('v_lshl_add_u32 v%d, v9, 4, v%d' % (vglb, vglb))

def late_loads():
    e('s_cmp_ge_u32 s%d, 4' % S_WAVE)
    e('s_cselect_b32 s44, 1, 0')
    e('s_cmp_lt_u32 s2, 224')
    e('s_cselect_b32 s45, 1, 0')
    e('s_and_b32 s57, s44, s45')
    e('s_cmp_lg_u32 s57, 0')
    e('s_cselect_b64 exec, -1, 0')
    load_block(T2, S_WDB, 2048, 5)
    e('s_cmp_ge_u32 s2, 128')
    e('s_cselect_b64 exec, -1, 0')
    load_block(T1, S_T1, 2048, 4)
    e('s_mov_b64 exec, -1')

e('s_cmp_ge_u32 s2, 256')
e('s_cbranch_scc1 L_end')
stamp(0)
e('s_load_dwordx16 s[4:19], s[0:1], 0')
e('s_load_dwordx8 s[20:27], s[0:1], 64')
e('v_and_b32 v1, 63, v0')
e('v_lshrrev_b32 v2, 4, v1')
e('v_and_b32 v3, 15, v1')
e('v_lshrrev_b32 v4, 6, v0')
e('s_mov_b32 s%d, 0x05040100' % S_SEL0)
e('v_readfirstlane_b32 s%d, v4' % S_WAVE)
e('s_mov_b32 s%d, 0x07060302' % S_SEL1)
e('s_waitcnt lgkmcnt(0)')

if OPT['pref']:
    cmt('---- code prefetch into L2 (wave 7 of the first 16 WGs)')
    e('s_cmp_lg_u32 s%d, 7' % S_WAVE)
    e('s_cbranch_scc1 L_nopref')
    e('s_cmp_ge_u32 s2, 16')
    e('s_cbranch_scc1 L_nopref')
    e('s_getpc_b64 s[44:45]')
    e('v_lshlrev_b32 v4, 4, v1')
    e('PREFETCH_PLACEHOLDER')
    lab('L_nopref')

e('s_or_b32 s44, s2, s%d' % S_WAVE)
e('s_cmp_lg_u32 s44, 0')
e('s_cbranch_scc1 L_nononce')
e('s_memrealtime s[44:45]')
e('s_waitcnt lgkmcnt(0)')
e('s_or_b32 s44, s44, 1')
e('v_mov_b32 v4, s44')
e('v_mov_b32 v5, 0')
e('s_mov_b64 exec, 1')
e('global_store_dword v5, v4, %s sc1' % sr(S_DBG))
e('s_mov_b64 exec, -1')
lab('L_nononce')

e('s_sub_u32 s58, s%d, 1' % S_WAVE)
e('s_cmp_ge_u32 s58, 4')
e('s_cbranch_scc1 L_nox')
e('s_lshl_b32 s44, s58, 11')
e('v_lshlrev_b32 v4, 4, v1')
e('v_add_u32 v4, s44, v4')
e('global_load_dwordx4 %s, v4, %s' % (vr(TMP), sr(S_X)))
e('global_load_dwordx4 %s, v4, %s offset:1024' % (vr(TMP + 4), sr(S_X)))
lab('L_nox')

e('s_cmp_ge_u32 s2, 128')
e('s_cbranch_scc1 L_t1wo')
e('s_lshr_b32 s44, s2, 5')
e('s_lshl_b32 s44, s44, 8')
e('s_lshl_b32 s45, s%d, 5' % S_WAVE)
e('s_add_u32 s44, s44, s45')
e('s_lshl_b32 s46, s44, 13')
e('s_and_b32 s45, s2, 31')
e('s_lshl_b32 s45, s45, 8')
e('s_add_u32 s46, s46, s45')
add64(S_T1, S_WQ, 46)
e('s_mov_b32 s%d, 8192' % S_RS1)
e('s_mov_b32 s47, s44')
e('s_branch L_t1done')
lab('L_t1wo')
e('s_sub_u32 s44, s2, 128')
e('s_lshr_b32 s45, s44, 1')
e('s_lshl_b32 s45, s45, 6')
e('s_lshr_b32 s46, s%d, 2' % S_WAVE)
e('s_lshl_b32 s46, s46, 5')
e('s_add_u32 s45, s45, s46')
e('s_lshl_b32 s45, s45, 11')
e('s_and_b32 s46, s44, 1')
e('s_lshl_b32 s46, s46, 10')
e('s_add_u32 s45, s45, s46')
e('s_and_b32 s46, s%d, 3' % S_WAVE)
e('s_lshl_b32 s46, s46, 8')
e('s_add_u32 s45, s45, s46')
add64(S_T1, S_WO, 45)
e('s_mov_b32 s%d, 2048' % S_RS1)
e('s_mov_b32 s47, 0')
lab('L_t1done')
e('s_cmp_ge_u32 s2, 112')
e('s_cselect_b32 s48, 1, 0')
e('s_mul_i32 s44, s48, 112')
e('s_sub_u32 s44, s2, s44')
e('s_mul_i32 s45, s44, 2341')
e('s_lshr_b32 s49, s45, 16')
e('s_mul_i32 s45, s49, 28')
e('s_sub_u32 s50, s44, s45')
e('s_lshl_b32 s44, s49, 8')
e('s_lshl_b32 s45, s%d, 5' % S_WAVE)
e('s_add_u32 s51, s44, s45')
e('s_mul_i32 s44, s51, 7168')
e('s_lshl_b32 s45, s50, 8')
e('s_add_u32 s44, s44, s45')
e('s_cmp_eq_u32 s48, 0')
e('s_cselect_b32 s52, s%d, s%d' % (S_WG, S_WU))
e('s_cselect_b32 s53, s%d, s%d' % (S_WG + 1, S_WU + 1))
add64(S_T2, 52, 44)
e('s_lshl_b32 s44, s2, 17')
e('s_lshl_b32 s45, s%d, 14' % S_WAVE)
e('s_add_u32 s44, s44, s45')
add64(S_KB, S_K, 44)
add64(S_VB, S_V, 44)
e('s_lshr_b32 s44, s2, 2')
e('s_lshl_b32 s44, s44, 6')
e('s_lshr_b32 s45, s%d, 1' % S_WAVE)
e('s_and_b32 s45, s45, 1')
e('s_lshl_b32 s45, s45, 5')
e('s_add_u32 s44, s44, s45')
e('s_lshl_b32 s44, s44, 11')
e('s_and_b32 s45, s2, 3')
e('s_lshl_b32 s45, s45, 9')
e('s_add_u32 s44, s44, s45')
e('s_and_b32 s45, s%d, 1' % S_WAVE)
e('s_lshl_b32 s45, s45, 8')
e('s_add_u32 s44, s44, s45')
add64(S_WDB, S_WD, 44)

e('s_cmp_ge_u32 s58, 4')
e('s_cbranch_scc1 L_noln')
e('s_waitcnt vmcnt(0)')
X = TMP + 8
for i in range(8):
    e('v_lshlrev_b32 v%d, 16, v%d' % (X + 2 * i, TMP + i))
    e('v_and_b32 v%d, 0xffff0000, v%d' % (X + 2 * i + 1, TMP + i))
e('v_add_f32 v4, v%d, v%d' % (X, X + 1))
for i in range(2, 16):
    e('v_add_f32 v4, v4, v%d' % (X + i))
row_allreduce('add', 4)
xrow_allreduce('add', 4, 5)
e('v_mul_f32 v4, 0x3a800000, v4')
e('v_sub_f32 v5, v%d, v4' % X)
e('v_mul_f32 v6, v5, v5')
for i in range(1, 16):
    e('v_sub_f32 v5, v%d, v4' % (X + i))
    e('v_fmac_f32 v6, v5, v5')
row_allreduce('add', 6)
xrow_allreduce('add', 6, 5)
e('v_mul_f32 v6, 0x3a800000, v6')
bf16_round(4, 4)
bf16_round(6, 6)
e('v_add_f32 v6, %s, v6' % f32(1e-5))
bf16_round(6, 6)
e('v_sqrt_f32 v6, v6')
e('s_nop 0')
bf16_round(6, 6)
e('v_rcp_f32 v7, v6')
e('s_nop 0')
for i in range(16):
    e('v_sub_f32 v5, v%d, v4' % (X + i))
    bf16_round(5, 5)
    e('v_mul_f32 v8, v5, v7')
    e('v_fma_f32 v9, -v8, v6, v5')
    e('v_fma_f32 v%d, v9, v7, v8' % (X + i))
for i in range(8):
    e('v_cvt_pk_bf16_f32 v%d, v%d, v%d' % (TMP + i, X + 2 * i, X + 2 * i + 1))
e('s_lshl_b32 s44, s58, 11')
e('v_lshlrev_b32 v4, 4, v1')
e('v_add_u32 v4, s44, v4')
e('ds_write_b128 v4, %s offset:%d' % (vr(TMP), XN))
e('ds_write_b128 v4, %s offset:%d' % (vr(TMP + 4), XN + 1024))
lab('L_noln')

e('s_cmp_lt_u32 s2, 128')
e('s_cselect_b64 exec, -1, 0')
load_block(T1, S_T1, 's%d' % S_RS1, 4)
e('s_cmp_lt_u32 s2, 224')
e('s_cselect_b64 exec, -1, 0')
load_block(T2, S_T2, 7168, 5)
e('s_cmp_ge_u32 s%d, 2' % S_WAVE)
e('s_cselect_b64 exec, -1, 0')
load_K(6, 0, NKE)
e('s_mov_b64 exec, -1')

e('s_cmp_lg_u32 s%d, 0' % S_WAVE)
e('s_cbranch_scc1 L_noclr')
e('v_mov_b32 v4, %d' % NONCE)
e('v_mov_b32 v6, 0')
e('v_mov_b32 v7, 0')
e('ds_write_b64 v4, v[6:7] offset:8')
e('ds_write_b64 v4, v[6:7] offset:16')
lab('L_noclr')
stamp(1)
e('s_waitcnt lgkmcnt(0)')
e('s_barrier')
stamp(2)

e('v_and_b32 v4, 3, v3')
e('v_lshlrev_b32 v4, 11, v4')
e('v_lshl_add_u32 v4, v2, 4, v4')
e('s_lshl_b32 s44, s%d, 11' % S_WAVE)
e('v_lshlrev_b32 v6, 5, v3')
e('v_add_u32 v6, s44, v6')
e('s_cmp_ge_u32 s2, 128')
e('s_cbranch_scc1 L_noq')
e('s_lshl_b32 s44, s47, 1')
e('v_add_u32 v5, s44, v4')
e('ds_read_b128 %s, v5 offset:%d' % (vr(AF), XN))
e('s_waitcnt vmcnt(%d) lgkmcnt(0)' % (8 + NKE))
gemv_block(T1, AF, VV, False)
e('v_add_u32 v7, %d, v6' % P1)
write_part(VV, False, 7, '0xffff', 256)
lab('L_noq')
e('s_cmp_ge_u32 s2, 224')
e('s_cbranch_scc1 L_nogu')
e('s_lshl_b32 s44, s51, 1')
e('v_add_u32 v5, s44, v4')
e('ds_read_b128 %s, v5 offset:%d' % (vr(AF), XN))
e('s_waitcnt vmcnt(%d) lgkmcnt(0)' % NKE)
gemv_block(T2, AF, VV + 32, False)
e('v_add_u32 v7, %d, v6' % P2)
write_part(VV + 32, False, 7, '0xffff', 256)
lab('L_nogu')

e('s_cmp_lg_u32 s%d, 0' % S_WAVE)
e('s_cbranch_scc1 L_nononce2')
e('s_mov_b32 s%d, 0' % S_SPIN)
e('v_mov_b32 v5, 0')
lab('L_noncepoll')
e('global_load_dword v4, v5, %s sc1' % sr(S_DBG))
e('s_waitcnt vmcnt(0)')
e('v_readfirstlane_b32 s44, v4')
e('s_cmp_lg_u32 s44, 0')
e('s_cbranch_scc1 L_noncegot')
e('s_add_u32 s%d, s%d, 1' % (S_SPIN, S_SPIN))
e('s_cmp_ge_u32 s%d, %d' % (S_SPIN, SPIN_MAX))
e('s_cbranch_scc1 L_noncegot')
e('s_sleep 1')
e('s_branch L_noncepoll')
lab('L_noncegot')
e('v_mov_b32 v5, %d' % NONCE)
e('ds_write_b32 v5, v4')
lab('L_nononce2')
stamp(3)
e('s_waitcnt lgkmcnt(0)')
e('s_barrier')
e('v_mov_b32 v5, %d' % NONCE)
e('ds_read_b32 v4, v5')
stamp(4)

e('v_mov_b32 v%d, 0xff' % VFF)
e('s_waitcnt lgkmcnt(0)')
e('v_readfirstlane_b32 s%d, v4' % S_TAG)
e('s_nop 3')
e('s_and_b32 s%d, s%d, 0xff' % (S_TG, S_TAG))
e('s_bfe_u32 s%d, s%d, 0x80008' % (S_TG + 1, S_TAG))
e('s_bfe_u32 s%d, s%d, 0x80010' % (S_TG + 2, S_TAG))
e('s_lshr_b32 s%d, s%d, 24' % (S_TG + 3, S_TAG))
e('s_cmp_lt_u32 s%d, 4' % S_WAVE)
e('s_cbranch_scc1 L_pubdone')
e('s_and_b32 s44, s%d, 1' % S_WAVE)
e('s_lshl_b32 s44, s44, 1')
e('v_lshrrev_b32 v6, 5, v1')
e('v_add_u32 v6, s44, v6')
e('v_and_b32 v7, 31, v1')
e('v_lshlrev_b32 v7, 4, v7')
e('s_cmp_lt_u32 s%d, 6' % S_WAVE)
e('s_cbranch_scc0 L_pubgu')
e('s_cmp_ge_u32 s2, 128')
e('s_cbranch_scc1 L_pubdone')
e('s_mov_b32 s45, %d' % P1)
e('s_lshr_b32 s46, s2, 5')
e('s_lshl_b32 s46, s46, 16')
e('s_and_b32 s54, s2, 31')
e('s_lshl_b32 s54, s54, 9')
e('s_add_u32 s46, s46, s54')
e('s_add_u32 s46, s46, %d' % QP)
e('s_mov_b32 s55, 16384')
e('s_branch L_pubgo')
lab('L_pubgu')
e('s_cmp_ge_u32 s2, 224')
e('s_cbranch_scc1 L_pubdone')
e('s_mov_b32 s45, %d' % P2)
e('s_lshl_b32 s46, s48, 2')
e('s_add_u32 s46, s46, s49')
e('s_mul_i32 s46, s46, %d' % (4 * 14336))
e('s_lshl_b32 s54, s50, 9')
e('s_add_u32 s46, s46, s54')
e('s_add_u32 s46, s46, %d' % GP)
e('s_mov_b32 s55, 14336')
lab('L_pubgo')
e('v_lshl_add_u32 v4, v6, 9, v7')
e('v_add_u32 v4, s45, v4')
for v in range(8):
    e('ds_read_b128 %s, v4 offset:%d' % (vr(TMP + 4 * v), v * 2048))
e('v_mul_u32_u24 v5, s55, v6')
e('v_add3_u32 v5, v5, v7, s46')
e('s_waitcnt lgkmcnt(0)')
for k in range(4):
    e('v_add_f32 v%d, v%d, v%d' % (8 + k, TMP + k, TMP + 4 + k))
for v in range(2, 8):
    for k in range(4):
        e('v_add_f32 v%d, v%d, v%d' % (8 + k, 8 + k, TMP + 4 * v + k))
addtag([8, 9, 10, 11])
e('global_store_dwordx4 v5, v[8:11], %s sc1' % sr(S_WS))
lab('L_pubdone')

e('s_cmp_ge_u32 s%d, 2' % S_WAVE)
e('s_cbranch_scc1 L_bulk')
THR[0] = OPT['thrg']
load_K(6, 0, 16)
load_V(6)
csync_inc()
THR[0] = 0
e('s_cmp_eq_u32 s%d, 1' % S_WAVE)
e('s_cbranch_scc1 L_hgather')
e('s_lshr_b32 s44, s2, 4')
e('s_lshl_b32 s44, s44, 12')
e('s_add_u32 s44, s44, %d' % QP)
e('v_lshlrev_b32 v4, 4, v1')
e('v_add_u32 v4, s44, v4')
def _q():
    for ks in range(4):
        e('v_add_u32 v5, %d, v4' % (ks * 65536))
        for i in range(4):
            e('global_load_dwordx4 %s, v5, %s offset:%d sc1' % (vr(T1 + 16 * ks + 4 * i), sr(S_WS), i * 1024))
spin_loop(_q, [T1 + 4 * i for i in range(16)], 8, 10, sleep=4)
untag([T1 + 4 * i for i in range(16)])
e('v_lshrrev_b32 v5, 5, v1')
e('v_mul_u32_u24 v5, %d, v5' % QLS)
e('v_and_b32 v6, 31, v1')
e('v_lshl_add_u32 v5, v6, 3, v5')
for i in range(4):
    for k in range(4):
        d = TMP + 4 * i + k
        e('v_add_f32 v%d, v%d, v%d' % (d, T1 + 4 * i + k, T1 + 16 + 4 * i + k))
        e('v_add_f32 v%d, v%d, v%d' % (d, d, T1 + 32 + 4 * i + k))
        e('v_add_f32 v%d, v%d, v%d' % (d, d, T1 + 48 + 4 * i + k))
    e('v_cvt_pk_bf16_f32 v6, v%d, v%d' % (TMP + 4 * i, TMP + 4 * i + 1))
    e('v_cvt_pk_bf16_f32 v7, v%d, v%d' % (TMP + 4 * i + 2, TMP + 4 * i + 3))
    e('ds_write_b64 v5, v[6:7] offset:%d' % (QL + 2 * QLS * i))
lds_flag_set(NONCE + 8)
stamp(5)
e('s_branch L_late_ld')

lab('L_hgather')
e('s_cmp_ge_u32 s2, 224')
e('s_cbranch_scc1 L_late_ld')
e('s_lshr_b32 s44, s2, 2')
e('s_lshl_b32 s44, s44, 8')
e('s_add_u32 s44, s44, %d' % GP)
e('v_mul_u32_u24 v4, 14336, v2')
e('v_lshl_add_u32 v4, v3, 4, v4')
e('v_add_u32 v4, s44, v4')
def _h():
    for i in range(8):
        e('v_add_u32 v5, %d, v4' % ((((i & 1) * 4 + (i >> 1)) * 4) * 14336))
        e('global_load_dwordx4 %s, v5, %s sc1' % (vr(T1 + 4 * i), sr(S_WS)))
spin_loop(_h, [T1 + 4 * i for i in range(8)], 8, 10, sleep=4)
untag([T1 + 4 * i for i in range(8)])
for m in range(2):
    for k in range(4):
        d = TMP + 4 * m + k
        e('v_add_f32 v%d, v%d, v%d' % (d, T1 + 4 * m + k, T1 + 8 + 4 * m + k))
        e('v_add_f32 v%d, v%d, v%d' % (d, d, T1 + 16 + 4 * m + k))
        e('v_add_f32 v%d, v%d, v%d' % (d, d, T1 + 24 + 4 * m + k))
        bf16_round(d, d)
for k in range(4):
    g_ = TMP + k; u_ = TMP + 4 + k
    e('v_mul_f32 v4, v%d, v%d' % (g_, g_))
    e('v_mul_f32 v4, v4, v%d' % g_)
    e('v_mov_b32 v5, %s' % f32(0.044715))
    e('v_fma_f32 v4, v4, v5, v%d' % g_)
    e('v_mul_f32 v4, %s, v4' % f32(-2.0 * 0.7978845608028654 * 1.4426950408889634))
    sigmoid_mul(6, g_, 4, 5)
    bf16_round(6, 6)
    e('v_mul_f32 v%d, v6, v%d' % (g_, u_))
e('v_lshlrev_b32 v5, 3, v1')
e('v_cvt_pk_bf16_f32 v6, v%d, v%d' % (TMP, TMP + 1))
e('v_cvt_pk_bf16_f32 v7, v%d, v%d' % (TMP + 2, TMP + 3))
e('ds_write_b64 v5, v[6:7] offset:%d' % HL)
lds_flag_set(NONCE + 12)
stamp(5)
e('s_branch L_late_ld')

lab('L_bulk')
THR[0] = OPT['thr']
load_K(6, NKE, 16)
load_V(6)
csync_inc()
lab('L_late_ld')
if OPT['csync']:
    top = uid('L_cs'); done = uid('L_csd')
    e('s_mov_b32 s%d, 0' % S_SPIN)
    e('v_mov_b32 v4, %d' % (NONCE + 16))
    lab(top)
    e('ds_read_b32 v5, v4')
    e('s_waitcnt lgkmcnt(0)')
    e('v_readfirstlane_b32 s44, v5')
    e('s_cmp_ge_u32 s44, 8')
    e('s_cbranch_scc1 %s' % done)
    e('s_add_u32 s%d, s%d, 1' % (S_SPIN, S_SPIN))
    e('s_cmp_ge_u32 s%d, %d' % (S_SPIN, SPIN_MAX * 20))
    e('s_cbranch_scc1 %s' % done)
    e('s_sleep 1')
    e('s_branch %s' % top)
    lab(done)
if not OPT['late']:
    late_loads()
THR[0] = 0
stamp(6)
NKR = 16 - NKE

lds_flag_wait(NONCE + 8)
stamp(7)
QF = TMP
SV = TMP + 16
e('v_and_b32 v4, 7, v3')
e('v_mul_u32_u24 v4, %d, v4' % QLS)
e('v_lshl_add_u32 v4, v2, 4, v4')
for t in range(4):
    e('ds_read_b128 %s, v4 offset:%d' % (vr(QF + 4 * t), QL + 64 * t))
LX = 0 if OPT['late'] else 16
e('s_waitcnt vmcnt(%d) lgkmcnt(0)' % (16 + LX))
stamp(8)
for T in range(4):
    for t in range(4):
        e('v_mfma_f32_16x16x32_bf16 %s, %s, %s, %s' % (vr(SV + 4 * T), ar(16 * T + 4 * t), vr(QF + 4 * t), '0' if t == 0 else vr(SV + 4 * T)))
e('s_nop 7')
e('s_mov_b32 s44, %s' % f32(128 ** -0.5))
for i in range(0, 16, 2):
    e('v_cvt_pk_bf16_f32 v4, v%d, v%d' % (SV + i, SV + i + 1))
    e('v_lshlrev_b32 v5, 16, v4')
    e('v_and_b32 v6, 0xffff0000, v4')
    e('v_mul_f32 v5, s44, v5')
    e('v_mul_f32 v6, s44, v6')
    e('v_cvt_pk_bf16_f32 v4, v5, v6')
    e('v_lshlrev_b32 v%d, 16, v4' % (SV + i))
    e('v_and_b32 v%d, 0xffff0000, v4' % (SV + i + 1))
e('v_max3_f32 v8, v%d, v%d, v%d' % (SV, SV + 1, SV + 2))
for i in range(3, 15, 2):
    e('v_max3_f32 v8, v8, v%d, v%d' % (SV + i, SV + i + 1))
e('v_max_f32 v8, v8, v%d' % (SV + 15))
xrow_allreduce('max', 8, 5)
e('s_mov_b32 s44, 0x%x' % LOG2E)
e('v_mul_f32 v5, s44, v8')
for i in range(16):
    e('v_fma_f32 v%d, v%d, s44, -v5' % (SV + i, SV + i))
    e('v_exp_f32 v%d, v%d' % (SV + i, SV + i))
e('s_nop 0')
e('v_add_f32 v9, v%d, v%d' % (SV, SV + 1))
for i in range(2, 16):
    e('v_add_f32 v9, v9, v%d' % (SV + i))
xrow_allreduce('add', 9, 5)
for i in range(8):
    e('v_cvt_pk_bf16_f32 v%d, v%d, v%d' % (PREG + i, SV + 2 * i, SV + 2 * i + 1))
e('s_waitcnt vmcnt(%d)' % (8 + LX))
gemv_block(VV, PREG, 0, True, first=True)
e('s_waitcnt vmcnt(%d)' % LX)
stamp(9)
gemv_block(VV + 32, PREG + 4, 0, True, first=False)
e('s_lshl_b32 s44, s%d, 6' % S_WAVE)
e('v_lshlrev_b32 v4, 3, v1')
e('v_add_u32 v4, s44, v4')
e('s_mov_b64 exec, 0xff')
e('ds_write_b64 v4, v[8:9] offset:%d' % MLL)
e('s_mov_b64 exec, -1')
e('s_lshl_b32 s44, s%d, 12' % S_WAVE)
e('s_add_u32 s44, s44, %d' % OV)
e('v_lshlrev_b32 v7, 5, v3')
e('v_lshl_add_u32 v7, v2, 11, v7')
e('v_add_u32 v7, s44, v7')
write_part(0, True, 7, '0xffffffff', 512)
e('s_waitcnt lgkmcnt(0)')
e('s_barrier')
stamp(10)

e('s_lshl_b32 s44, s%d, 3' % S_WAVE)
e('v_mov_b32 v4, s44')
for v in range(8):
    e('ds_read_b64 %s, v4 offset:%d' % (vr(TMP + 2 * v, 2), MLL + 64 * v))
e('s_lshl_b32 s44, s%d, 9' % S_WAVE)
e('s_add_u32 s44, s44, %d' % OV)
e('v_and_b32 v6, 31, v1')
e('v_lshlrev_b32 v6, 4, v6')
e('v_add_u32 v5, s44, v6')
for v in range(8):
    e('ds_read_b128 %s, v5 offset:%d' % (vr(VV + 4 * v), 4096 * v))
e('s_lshl_b32 s44, s2, 3')
e('s_add_u32 s44, s44, s%d' % S_WAVE)
e('s_lshl_b32 s44, s44, 9')
e('s_add_u32 s44, s44, %d' % OP)
e('v_add_u32 v%d, s44, v6' % (TMP + 16))
e('s_lshr_b32 s44, s2, 4')
e('s_lshl_b32 s44, s44, 3')
e('s_add_u32 s44, s44, s%d' % S_WAVE)
e('s_lshl_b32 s44, s44, 4')
e('s_and_b32 s45, s2, 15')
e('s_add_u32 s44, s44, s45')
e('s_lshl_b32 s44, s44, 4')
e('s_add_u32 s44, s44, %d' % ML)
e('v_mov_b32 v%d, s44' % (TMP + 17))
e('s_waitcnt lgkmcnt(0)')
e('v_max3_f32 v8, v%d, v%d, v%d' % (TMP, TMP + 2, TMP + 4))
e('v_max3_f32 v8, v8, v%d, v%d' % (TMP + 6, TMP + 8))
e('v_max3_f32 v8, v8, v%d, v%d' % (TMP + 10, TMP + 12))
e('v_max_f32 v8, v8, v%d' % (TMP + 14))
e('s_mov_b32 s46, 0x%x' % LOG2E)
for v in range(8):
    e('v_sub_f32 v%d, v%d, v8' % (TMP + 2 * v, TMP + 2 * v))
    e('v_mul_f32 v%d, s46, v%d' % (TMP + 2 * v, TMP + 2 * v))
    e('v_exp_f32 v%d, v%d' % (TMP + 2 * v, TMP + 2 * v))
e('s_nop 0')
for k in range(4):
    e('v_mul_f32 v%d, v%d, v%d' % (4 + k, TMP, VV + k))
e('v_mul_f32 v9, v%d, v%d' % (TMP, TMP + 1))
for v in range(1, 8):
    for k in range(4):
        e('v_fmac_f32 v%d, v%d, v%d' % (4 + k, TMP + 2 * v, VV + 4 * v + k))
    e('v_fmac_f32 v9, v%d, v%d' % (TMP + 2 * v, TMP + 2 * v + 1))
e('v_mov_b32 v10, v8')
e('v_mov_b32 v11, v9')
addtag([4, 5, 6, 7])
addtag([8, 9, 10, 11])
e('s_mov_b32 exec_hi, 0')
e('global_store_dwordx4 v%d, v[4:7], %s sc1' % (TMP + 16, sr(S_WS)))
e('s_mov_b64 exec, 1')
e('global_store_dwordx4 v%d, v[8:11], %s sc1' % (TMP + 17, sr(S_WS)))
e('s_mov_b64 exec, -1')
stamp(11)
if OPT['late']:
    late_loads()
e('s_cmp_eq_u32 s57, 0')
e('s_cbranch_scc1 L_nodown')
lds_flag_wait(NONCE + 12)
e('s_lshr_b32 s44, s%d, 1' % S_WAVE)
e('s_and_b32 s44, s44, 1')
e('s_lshl_b32 s44, s44, 6')
e('v_and_b32 v4, 3, v3')
e('v_lshlrev_b32 v4, 7, v4')
e('v_lshl_add_u32 v4, v2, 4, v4')
e('v_add_u32 v4, s44, v4')
e('ds_read_b128 %s, v4 offset:%d' % (vr(AF), HL))
e('s_waitcnt vmcnt(%d) lgkmcnt(0)' % (8 if OPT['late'] else 10))
gemv_block(T2, AF, T2, False)
e('s_sub_u32 s44, s%d, 4' % S_WAVE)
e('s_lshl_b32 s44, s44, 11')
e('s_add_u32 s44, s44, %d' % P3)
e('v_lshlrev_b32 v7, 5, v3')
e('v_add_u32 v7, s44, v7')
write_part(T2, False, 7, '0xffff', 256)
lab('L_nodown')

e('s_cmp_ge_u32 s2, 128')
e('s_cbranch_scc1 L_wo')
e('s_waitcnt lgkmcnt(0)')
e('s_barrier')
e('s_cmp_ge_u32 s2, 224')
e('s_cbranch_scc1 L_nodpubA')
e('s_cmp_ge_u32 s%d, 4' % S_WAVE)
e('s_cbranch_scc1 L_nodpubA')
e('s_lshl_b32 s46, s%d, 9' % S_WAVE)
e('v_lshrrev_b32 v6, 5, v1')
e('v_lshlrev_b32 v6, 11, v6')
e('v_and_b32 v7, 31, v1')
e('v_lshl_add_u32 v6, v7, 4, v6')
e('v_add_u32 v6, s46, v6')
e('ds_read_b128 v[12:15], v6 offset:%d' % P3)
e('ds_read_b128 v[16:19], v6 offset:%d' % (P3 + 4096))
e('s_lshl_b32 s44, s%d, 12' % S_WAVE)
e('s_lshr_b32 s45, s2, 2')
e('s_lshl_b32 s45, s45, 14')
e('s_add_u32 s44, s44, s45')
e('s_and_b32 s45, s2, 3')
e('s_lshl_b32 s45, s45, 10')
e('s_add_u32 s44, s44, s45')
e('s_add_u32 s44, s44, %d' % DP)
e('v_lshlrev_b32 v7, 4, v1')
e('v_add_u32 v7, s44, v7')
e('s_waitcnt lgkmcnt(0)')
for k in range(4):
    e('v_add_f32 v%d, v%d, v%d' % (12 + k, 12 + k, 16 + k))
addtag([12, 13, 14, 15])
e('global_store_dwordx4 v7, v[12:15], %s sc1' % sr(S_WS))
lab('L_nodpubA')
e('s_branch L_final')
lab('L_wo')
e('s_sub_u32 s44, s2, 128')
e('s_lshr_b32 s45, s44, 2')
e('s_lshr_b32 s46, s45, 3')
e('s_and_b32 s54, s45, 7')
e('s_lshr_b32 s55, s44, 1')
e('s_and_b32 s55, s55, 1')
e('s_lshl_b32 s56, s46, 16')
e('s_lshl_b32 s57, s54, 9')
e('s_add_u32 s56, s56, s57')
e('s_lshl_b32 s57, s55, 8')
e('s_add_u32 s56, s56, s57')
e('s_lshl_b32 s57, s%d, 5' % S_WAVE)
e('s_add_u32 s56, s56, s57')
e('s_add_u32 s56, s56, %d' % OP)
e('v_lshlrev_b32 v4, 18, v2')
e('v_lshlrev_b32 v5, 12, v3')
e('v_add3_u32 v4, v4, v5, s56')
e('s_lshl_b32 s56, s46, 11')
e('s_lshl_b32 s57, s54, 8')
e('s_add_u32 s56, s56, s57')
e('s_add_u32 s56, s56, %d' % ML)
e('v_lshlrev_b32 v5, 13, v2')
e('v_lshlrev_b32 v6, 4, v3')
e('v_add3_u32 v5, v5, v6, s56')
def _o():
    e('global_load_dwordx4 %s, v5, %s sc1' % (vr(VV + 8), sr(S_WS)))
    for i in range(2):
        e('global_load_dwordx4 %s, v4, %s offset:%d sc1' % (vr(VV + 4 * i), sr(S_WS), 16 * i))
spin_loop(_o, [VV, VV + 4, VV + 8], 8, 10, sleep=1)
stamp(12)
untag([VV, VV + 4, VV + 8])
e('v_mov_b32 v8, v%d' % (VV + 8))
row_allreduce('max', 8)
e('s_mov_b32 s44, 0x%x' % LOG2E)
e('v_sub_f32 v8, v%d, v8' % (VV + 8))
e('v_mul_f32 v8, s44, v8')
e('v_exp_f32 v8, v8')
e('s_nop 0')
e('v_mul_f32 v9, v8, v%d' % (VV + 9))
row_allreduce('add', 9)
e('v_rcp_f32 v10, v9')
e('s_nop 0')
e('v_fma_f32 v11, -v9, v10, 1.0')
e('v_fma_f32 v10, v11, v10, v10')
e('v_mul_f32 v8, v8, v10')
for i in range(8):
    e('v_mul_f32 v%d, v8, v%d' % (TMP + i, VV + i))
for sh in (8, 4, 2, 1):
    if sh == 8:
        e('s_nop 1')
    for i in range(8):
        e('v_add_f32_dpp v%d, v%d, v%d row_ror:%d row_mask:0xf bank_mask:0xf' % (TMP + i, TMP + i, TMP + i, sh))
for i in range(4):
    e('v_cvt_pk_bf16_f32 v%d, v%d, v%d' % (TMP + 8 + i, TMP + 2 * i, TMP + 2 * i + 1))
e('s_lshl_b32 s44, s%d, 4' % S_WAVE)
e('v_lshlrev_b32 v4, 7, v2')
e('v_add_u32 v4, s44, v4')
e('s_mov_b32 exec_lo, 0x00010001')
e('s_mov_b32 exec_hi, 0x00010001')
e('ds_write_b128 v4, %s offset:%d' % (vr(TMP + 8), OL))
e('s_mov_b64 exec, -1')
transpose_block(T1)
e('s_lshr_b32 s44, s%d, 2' % S_WAVE)
e('s_lshl_b32 s44, s44, 6')
e('v_and_b32 v4, 3, v3')
e('v_lshlrev_b32 v4, 7, v4')
e('v_lshl_add_u32 v4, v2, 4, v4')
e('v_add_u32 v4, s44, v4')
e('s_lshl_b32 s44, s%d, 11' % S_WAVE)
e('s_add_u32 s44, s44, %d' % P4)
e('v_lshlrev_b32 v7, 5, v3')
e('v_add_u32 v7, s44, v7')
e('s_waitcnt lgkmcnt(0)')
e('s_barrier')
stamp(13)
e('ds_read_b128 %s, v4 offset:%d' % (vr(AF), OL))
e('s_waitcnt lgkmcnt(0)')
for c in range(8):
    e('v_mfma_f32_16x16x32_bf16 %s, %s, %s, 0' % (ar(4 * c), vr(AF), vr(TMP + 4 * c)))
write_part(0, True, 7, '0xffff', 256)
e('s_and_b32 s44, s%d, 3' % S_WAVE)
e('s_lshr_b32 s45, s%d, 2' % S_WAVE)
e('s_lshl_b32 s46, s44, 9')
e('s_lshl_b32 s54, s45, 12')
e('s_add_u32 s46, s46, s54')
e('v_lshrrev_b32 v6, 5, v1')
e('v_lshlrev_b32 v6, 11, v6')
e('v_and_b32 v7, 31, v1')
e('v_lshl_add_u32 v6, v7, 4, v6')
e('v_add_u32 v6, s46, v6')
e('s_lshl_b32 s44, s44, 12')
e('s_lshl_b32 s45, s45, 10')
e('s_add_u32 s44, s44, s45')
e('s_sub_u32 s46, s2, 128')
e('s_lshr_b32 s45, s46, 1')
e('s_lshl_b32 s45, s45, 14')
e('s_add_u32 s44, s44, s45')
e('s_and_b32 s46, s46, 1')
e('s_lshl_b32 s46, s46, 11')
e('s_add_u32 s44, s44, s46')
e('s_add_u32 s44, s44, %d' % SP)
e('v_lshlrev_b32 v5, 4, v1')
e('v_add_u32 v5, s44, v5')
e('s_waitcnt lgkmcnt(0)')
e('s_barrier')
e('ds_read_b128 %s, v6 offset:%d' % (vr(TMP), P4))
e('ds_read_b128 %s, v6 offset:%d' % (vr(TMP + 4), P4 + 8192))
e('s_waitcnt lgkmcnt(0)')
for k in range(4):
    e('v_add_f32 v%d, v%d, v%d' % (8 + k, TMP + k, TMP + 4 + k))
addtag([8, 9, 10, 11])
e('global_store_dwordx4 v5, v[8:11], %s sc1' % sr(S_WS))
e('s_cmp_ge_u32 s2, 224')
e('s_cbranch_scc1 L_nodpubB')
e('s_cmp_ge_u32 s%d, 4' % S_WAVE)
e('s_cbranch_scc1 L_nodpubB')
e('s_lshl_b32 s46, s%d, 9' % S_WAVE)
e('v_lshrrev_b32 v6, 5, v1')
e('v_lshlrev_b32 v6, 11, v6')
e('v_and_b32 v7, 31, v1')
e('v_lshl_add_u32 v6, v7, 4, v6')
e('v_add_u32 v6, s46, v6')
e('ds_read_b128 v[12:15], v6 offset:%d' % P3)
e('ds_read_b128 v[16:19], v6 offset:%d' % (P3 + 4096))
e('s_lshl_b32 s44, s%d, 12' % S_WAVE)
e('s_lshr_b32 s45, s2, 2')
e('s_lshl_b32 s45, s45, 14')
e('s_add_u32 s44, s44, s45')
e('s_and_b32 s45, s2, 3')
e('s_lshl_b32 s45, s45, 10')
e('s_add_u32 s44, s44, s45')
e('s_add_u32 s44, s44, %d' % DP)
e('v_lshlrev_b32 v7, 4, v1')
e('v_add_u32 v7, s44, v7')
e('s_waitcnt lgkmcnt(0)')
for k in range(4):
    e('v_add_f32 v%d, v%d, v%d' % (12 + k, 12 + k, 16 + k))
addtag([12, 13, 14, 15])
e('global_store_dwordx4 v7, v[12:15], %s sc1' % sr(S_WS))
lab('L_nodpubB')
stamp(14)

lab('L_final')
e('s_cmp_lg_u32 s%d, 0' % S_WAVE)
e('s_cbranch_scc1 L_fin2')
e('s_lshr_b32 s44, s2, 6')
e('s_lshl_b32 s44, s44, 12')
e('s_and_b32 s45, s2, 63')
e('s_lshl_b32 s45, s45, 6')
e('s_add_u32 s44, s44, s45')
e('v_lshrrev_b32 v4, 2, v1')
e('v_lshlrev_b32 v4, 14, v4')
e('v_and_b32 v5, 3, v1')
e('v_lshlrev_b32 v5, 4, v5')
e('v_add3_u32 v4, v4, v5, s44')
e('s_lshl_b32 s45, s2, 5')
e('v_lshrrev_b32 v6, 1, v5')
e('v_add_u32 v6, s45, v6')
e('global_load_dwordx2 v[16:17], v6, %s' % sr(S_X))
for k in range(4):
    e('v_mov_b32 v%d, s%d' % (VV + 28 + k, S_TG + k))
def _f0():
    e('v_add_u32 v5, %d, v4' % (SP + 3 * 262144))
    e('global_load_dwordx4 %s, v5, %s sc1' % (vr(VV), sr(S_WS)))
spin_loop(_f0, [VV], 8, 10, sleep=1)
def _f():
    for i in range(4):
        e('v_add_u32 v5, %d, v4' % (SP + i * 262144))
        e('global_load_dwordx4 %s, v5, %s sc1' % (vr(VV + 4 * i), sr(S_WS)))
    for i in range(4):
        e('v_add_u32 v5, %d, v4' % (DP + i * 262144))
        if i == 3:
            e('s_mov_b32 exec_hi, 0')
        e('global_load_dwordx4 %s, v5, %s sc1' % (vr(VV + 16 + 4 * i), sr(S_WS)))
    e('s_mov_b64 exec, -1')
spin_loop(_f, [VV + 4 * i for i in range(8)], 8, 10, sleep=1)
untag([VV + 4 * i for i in range(8)])
for k in range(4):
    e('v_add_f32 v%d, v%d, v%d' % (8 + k, VV + k, VV + 4 + k))
    e('v_add_f32 v%d, v%d, v%d' % (12 + k, VV + 16 + k, VV + 20 + k))
for i in range(2, 4):
    for k in range(4):
        e('v_add_f32 v%d, v%d, v%d' % (8 + k, 8 + k, VV + 4 * i + k))
        e('v_add_f32 v%d, v%d, v%d' % (12 + k, 12 + k, VV + 16 + 4 * i + k))
for sh in (8, 4):
    e('s_nop 1')
    for rg in range(8, 16):
        e('v_add_f32_dpp v%d, v%d, v%d row_ror:%d row_mask:0xf bank_mask:0xf' % (rg, rg, rg, sh))
for rg in range(8, 16):
    xrow_allreduce('add', rg, 5)
e('s_mov_b32 s44, 0x%x' % (LOG2E | 0x80000000))
e('v_lshlrev_b32 v%d, 16, v16' % TMP)
e('v_and_b32 v%d, 0xffff0000, v16' % (TMP + 1))
e('v_lshlrev_b32 v%d, 16, v17' % (TMP + 2))
e('v_and_b32 v%d, 0xffff0000, v17' % (TMP + 3))
for k in range(4):
    s_ = 8 + k; d_ = 12 + k; x_ = TMP + k
    bf16_round(s_, s_)
    bf16_round(d_, d_)
    e('v_mul_f32 v4, s44, v%d' % d_)
    sigmoid_mul(5, d_, 4, 7)
    bf16_round(5, 5)
    e('v_mul_f32 v5, v%d, v5' % s_)
    bf16_round(5, 5)
    e('v_add_f32 v%d, v%d, v5' % (x_, x_))
e('v_cvt_pk_bf16_f32 v12, v%d, v%d' % (TMP, TMP + 1))
e('v_cvt_pk_bf16_f32 v13, v%d, v%d' % (TMP + 2, TMP + 3))
e('s_mov_b64 exec, 0xf')
e('global_store_dwordx2 v6, v[12:13], %s' % sr(S_OUT))
lab('L_fin2')
if OPT['dbg']:
    e('s_cmp_lg_u32 s%d, 0' % S_WAVE)
    e('s_cbranch_scc1 L_end')
    stamp(15)
    e('s_mov_b64 exec, 1')
    e('s_waitcnt lgkmcnt(0)')
    e('v_mov_b32 v5, 0')
    for i in (0, 4, 5, 10, 12, 14, 15):
        e('s_sub_u32 s44, s%d, s%d' % (64 + 2 * i, S_TAG))
        e('s_cmp_gt_u32 s44, 100000')
        e('s_cselect_b32 s44, 0, s44')
        e('v_mov_b32 v4, s44')
        e('global_atomic_umax v5, v4, %s offset:%d' % (sr(S_DBG), 4 * (1 + i) if i < 15 else 60))
if OPT['stamps']:
    stamp(15)
    e('s_mov_b64 exec, 1')
    e('s_waitcnt lgkmcnt(0)')
    e('s_lshl_b32 s44, s2, 3')
    e('s_add_u32 s44, s44, s%d' % S_WAVE)
    e('s_lshl_b32 s44, s44, 6')
    e('s_add_u32 s44, s44, %d' % STAMPS)
    e('v_mov_b32 v5, s44')
    for i in range(16):
        e('v_mov_b32 v4, s%d' % (64 + 2 * i))
        e('global_store_dword v5, v4, %s offset:%d' % (sr(S_WS), 4 * i))
lab('L_end')
e('s_endpgm')

if OPT['pref']:
    import subprocess, re
    body = '\n'.join(x for x in L if 'PREFETCH_PLACEHOLDER' not in x)
    open('_sz.s', 'w').write('.amdgcn_target "amdgcn-amd-amdhsa--gfx950"\n.text\n' + body + '\n')
    subprocess.check_call(['clang', '-x', 'assembler', '-target', 'amdgcn-amd-amdhsa', '-mcpu=gfx950', '-c', '_sz.s', '-o', '_sz.o'])
    out = subprocess.check_output(['llvm-readelf', '-S', '_sz.o']).decode()
    tsz = int(re.search(r'\.text\s+PROGBITS\s+\S+\s+\S+\s+(\S+)', out).group(1), 16)
    nkb = (tsz - 128) // 1024
    print('code bytes', tsz, 'prefetch KB', nkb)
    pl = []
    for i in range(nkb):
        pl.append('    global_load_dwordx4 v[%d:%d], v4, s[44:45]' % (TMP + 28, TMP + 31))
        pl.append('    v_add_u32 v4, 1024, v4')
    idx = L.index('    PREFETCH_PLACEHOLDER')
    L[idx:idx + 1] = pl

hdr = open('cdna_kernels/%s.s.ref' % NAME).read().split('; Override')[0]
src = hdr
src += '; @launch grid=(256,1,1) block=(512,1,1) lds=%d\n' % LDS_BYTES
src += '.amdgcn_target "amdgcn-amd-amdhsa--gfx950"\n.text\n'
src += '.globl %s_kernel\n.p2align 8\n.type %s_kernel,@function\n%s_kernel:\n' % (NAME, NAME, NAME)
src += '\n'.join(L) + '\n'
src += '''.section .rodata,"a"
.p2align 6
.amdhsa_kernel %s_kernel
  .amdhsa_next_free_vgpr 252
  .amdhsa_next_free_sgpr 102
  .amdhsa_accum_offset %d
  .amdhsa_group_segment_fixed_size 0
  .amdhsa_kernarg_size 96
  .amdhsa_user_sgpr_count 2
  .amdhsa_user_sgpr_kernarg_segment_ptr 1
  .amdhsa_system_sgpr_workgroup_id_x 1
.end_amdhsa_kernel
''' % (NAME, NV)
open(OUT, 'w').write(src)
print('wrote', OUT, len(L), 'lines')
```

```python
import sys, struct
def f32(x):
    return '0x%08x' % struct.unpack('<I', struct.pack('<f', x))[0]

NAME = 'recurrent_scan__gqa_block_cached__glu_gated_geglu__decode'
OUT = 'cdna_kernels/%s.s' % NAME

OPT = dict(nt=1, stamps=0, nke=4, pref=1, thr=8, thrg=8, late=3, gq=0, csync=1, dbg=0, fpp=0, nohand=0, nost=0, nold=0, once=0, skipq=0, skiph=0, qn=4, slp=1, each=0)
for a in sys.argv[1:]:
    if '=' in a:
        k, v = a.split('=')
        if k == 'out':
            OUT = v
        else:
            OPT[k] = int(v)

L = []
def e(s):
    if (OPT['nohand'] or OPT['nost']) and s.startswith('global_store_dwordx4') and 'sc1' in s:
        return
    L.append('    ' + s)
def lab(s):
    L.append(s + ':')
def cmt(s):
    L.append('    ; ' + s)
_uid = [0]
def uid(p):
    _uid[0] += 1
    return '%s_%d' % (p, _uid[0])

QP = 0x000000
GP = 0x080000
OP = 0x200000
ML = 0x400000
SP = 0x500000
DP = 0x700000
STAMPS = 0x1000000

XN = 0
NONCE = 8192
QL = 8448
QLS = 272
HL = 10752
OL = 11264
MLL = 11776
P1 = 12288
P2 = 28672
P3 = 45056
P4 = 53248
OV = 69632
LDS_BYTES = 102400

T1 = 24
T2 = 56
VV = 88
TMP = 152
NV = 188
PREG = 12
AF = 20
S_X, S_K, S_V, S_WQ, S_WO, S_WG, S_WU, S_WD, S_OUT, S_DBG, S_WS = 4, 6, 8, 10, 12, 16, 18, 20, 22, 24, 26
S_WAVE, S_TAG, S_SEL0, S_SEL1 = 28, 29, 30, 31
S_T1, S_T2, S_KB, S_VB, S_WDB = 32, 34, 36, 38, 40
S_RS1 = 42
S_SPIN = 62
S_TG = 96
VFF = 184
LOG2E = 0x3fb8aa3b
SPIN_MAX = 200000
NKE = OPT['nke']

NT = ' nt' if OPT['nt'] else ''

def stamp(i):
    if OPT['stamps'] or OPT['dbg']:
        e('s_memrealtime s[%d:%d]' % (64 + 2 * i, 65 + 2 * i))

def vr(b, n=4):
    return 'v[%d:%d]' % (b, b + n - 1)
def ar(b, n=4):
    return 'a[%d:%d]' % (b, b + n - 1)
def sr(b, n=2):
    return 's[%d:%d]' % (b, b + n - 1)

def add64(dst, base, off_sreg):
    e('s_add_u32 s%d, s%d, s%d' % (dst, base, off_sreg))
    e('s_addc_u32 s%d, s%d, 0' % (dst + 1, base + 1))

THR = [0]
def thr():
    if THR[0]:
        e('s_waitcnt vmcnt(%d)' % (THR[0] - 1))

def load_block(dst, sbase, rs, vtmp):
    if isinstance(rs, int):
        e('v_mul_u32_u24 v%d, %d, v2' % (vtmp, 8 * rs))
    else:
        e('s_lshl_b32 s59, %s, 3' % rs)
        e('v_mul_u32_u24 v%d, s59, v2' % vtmp)
    e('v_lshl_add_u32 v%d, v3, 4, v%d' % (vtmp, vtmp))
    for i in range(8):
        thr()
        e('global_load_dwordx4 %s, v%d, %s%s' % (vr(dst + 4 * i), vtmp, sr(sbase), NT))
        if i < 7:
            e('v_add_u32 v%d, %s, v%d' % (vtmp, str(rs), vtmp))

def load_K(vtmp, lo, hi):
    if lo >= hi:
        return
    e('v_lshlrev_b32 v%d, 8, v3' % vtmp)
    e('v_lshl_add_u32 v%d, v2, 4, v%d' % (vtmp, vtmp))
    cur = 0
    for n in range(lo, hi):
        T, t = n >> 2, n & 3
        if T * 4096 != cur:
            e('v_add_u32 v%d, %d, v%d' % (vtmp, T * 4096 - cur, vtmp))
            cur = T * 4096
        thr()
        e('global_load_dwordx4 %s, v%d, %s offset:%d%s' % (ar(16 * T + 4 * t), vtmp, sr(S_KB), t * 64, NT))

def csync_inc():
    if OPT['csync']:
        e('v_mov_b32 v4, %d' % (NONCE + 16))
        e('v_mov_b32 v5, 1')
        e('s_mov_b64 exec, 1')
        e('ds_add_u32 v4, v5')
        e('s_mov_b64 exec, -1')

def load_V(vtmp):
    e('v_lshlrev_b32 v%d, 10, v2' % vtmp)
    e('v_lshl_add_u32 v%d, v3, 4, v%d' % (vtmp, vtmp))
    e('v_add_u32 v%d, 0x1000, v%d' % (vtmp, vtmp))
    for B in range(2):
        for j in range(8):
            off = (j >> 2) * 4096 - 4096 + (j & 3) * 256
            thr()
            e('global_load_dwordx4 %s, v%d, %s offset:%d%s' % (vr(VV + 32 * B + 4 * j), vtmp, sr(S_VB), off, NT))
        if B == 0:
            e('v_add_u32 v%d, 0x2000, v%d' % (vtmp, vtmp))

def transpose_block(T):
    for c in range(8):
        d = c >> 1
        sel = S_SEL0 if c % 2 == 0 else S_SEL1
        for jj in range(4):
            e('v_perm_b32 v%d, v%d, v%d, s%d' % (TMP + 4 * c + jj, T + 4 * (2 * jj + 1) + d, T + 4 * (2 * jj) + d, sel))

def gemv_block(T, A, acc, agpr, first=True):
    transpose_block(T)
    e('s_nop 1')
    f = ar if agpr else vr
    for c in range(8):
        e('v_mfma_f32_16x16x32_bf16 %s, %s, %s, %s' % (f(acc + 4 * c), vr(A), vr(TMP + 4 * c), '0' if first else f(acc + 4 * c)))

def write_part(acc, agpr, vaddr, nlanes_mask, cstride=None):
    e('s_nop 7')
    for i in range(4):
        for c in range(8):
            if agpr:
                e('v_accvgpr_read_b32 v%d, a%d' % (TMP + 8 * i + c, acc + 4 * c + i))
            else:
                e('v_mov_b32 v%d, v%d' % (TMP + 8 * i + c, acc + 4 * c + i))
    e('s_mov_b32 exec_lo, %s' % nlanes_mask)
    e('s_mov_b32 exec_hi, 0')
    for i in range(4):
        e('ds_write_b128 v%d, %s offset:%d' % (vaddr, vr(TMP + 8 * i), i * 512))
        e('ds_write_b128 v%d, %s offset:%d' % (vaddr, vr(TMP + 8 * i + 4), i * 512 + 16))
    e('s_mov_b64 exec, -1')

def bf16_round(dst, src):
    e('v_cvt_pk_bf16_f32 v%d, v%d, v%d' % (dst, src, src))
    e('v_and_b32 v%d, 0xffff0000, v%d' % (dst, dst))

def row_allreduce(op, v):
    for sh in (8, 4, 2, 1):
        e('s_nop 1')
        e('v_%s_f32_dpp v%d, v%d, v%d row_ror:%d row_mask:0xf bank_mask:0xf' % (op, v, v, v, sh))

def xrow_allreduce(op, v, t):
    e('v_mov_b32 v%d, v%d' % (t, v))
    e('s_nop 1')
    e('v_permlane16_swap_b32 v%d, v%d' % (v, t))
    e('s_nop 1')
    e('v_%s_f32 v%d, v%d, v%d' % (op, v, v, t))
    e('v_mov_b32 v%d, v%d' % (t, v))
    e('s_nop 1')
    e('v_permlane32_swap_b32 v%d, v%d' % (v, t))
    e('s_nop 1')
    e('v_%s_f32 v%d, v%d, v%d' % (op, v, v, t))

def addtag(regs4):
    for k, rg in enumerate(regs4):
        e('v_bfi_b32 v%d, v%d, s%d, v%d' % (rg, VFF, S_TG + (k & 3), rg))

def xrow_batch(op, regs, tmps):
    for rg, t in zip(regs, tmps):
        e('v_mov_b32 v%d, v%d' % (t, rg))
    if len(regs) < 3:
        e('s_nop 1')
    for rg, t in zip(regs, tmps):
        e('v_permlane16_swap_b32 v%d, v%d' % (rg, t))
    for rg, t in zip(regs, tmps):
        e('v_%s_f32 v%d, v%d, v%d' % (op, rg, rg, t))
    for rg, t in zip(regs, tmps):
        e('v_mov_b32 v%d, v%d' % (t, rg))
    if len(regs) < 3:
        e('s_nop 1')
    for rg, t in zip(regs, tmps):
        e('v_permlane32_swap_b32 v%d, v%d' % (rg, t))
    for rg, t in zip(regs, tmps):
        e('v_%s_f32 v%d, v%d, v%d' % (op, rg, rg, t))

def check_tags(quads, vbad, vt):
    first = True
    for q in quads:
        for k in (0, 2):
            if first:
                e('v_xor_b32 v%d, s%d, v%d' % (vbad, S_TG + k, q + k))
                e('v_xor_b32 v%d, s%d, v%d' % (vt, S_TG + k + 1, q + k + 1))
                e('v_or_b32 v%d, v%d, v%d' % (vbad, vbad, vt))
                first = False
            else:
                e('v_xor_b32 v%d, s%d, v%d' % (vt, S_TG + k, q + k))
                e('v_xor_b32 v%d, s%d, v%d' % (vt + 1, S_TG + k + 1, q + k + 1))
                e('v_or3_b32 v%d, v%d, v%d, v%d' % (vbad, vbad, vt, vt + 1))
    e('v_and_b32 v%d, 0xff, v%d' % (vbad, vbad))
    e('v_cmp_ne_u32 vcc, 0, v%d' % vbad)

def spin_loop(body_issue, tagregs, vbad, vt, sleep=2):
    if OPT['nohand'] or OPT['nold']:
        e('s_waitcnt vmcnt(0)')
        return
    if OPT['once']:
        body_issue()
        e('s_waitcnt vmcnt(0)')
        return
    top = uid('L_spin'); done = uid('L_spun')
    e('s_mov_b32 s%d, 0' % S_SPIN)
    lab(top)
    body_issue()
    e('s_waitcnt vmcnt(0)')
    check_tags(tagregs, vbad, vt)
    e('s_nop 1')
    e('s_cbranch_vccz %s' % done)
    e('s_add_u32 s%d, s%d, 1' % (S_SPIN, S_SPIN))
    e('s_cmp_ge_u32 s%d, %d' % (S_SPIN, SPIN_MAX))
    e('s_cbranch_scc1 %s' % done)
    if sleep:
        e('s_sleep %d' % sleep)
    e('s_branch %s' % top)
    lab(done)

def spin_each(issue_fns, quads, vbad, vt, sleep=0):
    if not OPT['each']:
        def body():
            for f in issue_fns:
                f()
        spin_loop(body, quads, vbad, vt, sleep=max(sleep, 0))
        return
    for f in issue_fns:
        f()
    n = len(issue_fns)
    e('s_mov_b32 s%d, 0' % S_SPIN)
    for i, (f, q) in enumerate(zip(issue_fns, quads)):
        top = uid('L_se'); done = uid('L_sed')
        e('s_waitcnt vmcnt(%d)' % (n - 1 - i))
        lab(top)
        check_tags([q], vbad, vt)
        e('s_nop 1')
        e('s_cbranch_vccz %s' % done)
        if OPT['once']:
            e('s_branch %s' % done)
        e('s_add_u32 s%d, s%d, 1' % (S_SPIN, S_SPIN))
        e('s_cmp_ge_u32 s%d, %d' % (S_SPIN, SPIN_MAX))
        e('s_cbranch_scc1 %s' % done)
        if sleep:
            e('s_sleep %d' % sleep)
        f()
        e('s_waitcnt vmcnt(0)')
        e('s_branch %s' % top)
        lab(done)

def untag(quads):
    for q in quads:
        for k in range(4):
            e('v_and_b32 v%d, 0xffffff00, v%d' % (q + k, q + k))

def lds_flag_wait(off):
    top = uid('L_fl'); done = uid('L_fld')
    e('s_mov_b32 s%d, 0' % S_SPIN)
    e('v_mov_b32 v4, %d' % off)
    lab(top)
    e('ds_read_b32 v5, v4')
    e('s_waitcnt lgkmcnt(0)')
    e('v_readfirstlane_b32 s44, v5')
    e('s_cmp_lg_u32 s44, 0')
    e('s_cbranch_scc1 %s' % done)
    e('s_add_u32 s%d, s%d, 1' % (S_SPIN, S_SPIN))
    e('s_cmp_ge_u32 s%d, %d' % (S_SPIN, SPIN_MAX * 20))
    e('s_cbranch_scc1 %s' % done)
    e('s_sleep 1')
    e('s_branch %s' % top)
    lab(done)

def lds_flag_set(off):
    e('s_waitcnt lgkmcnt(0)')
    e('v_mov_b32 v4, %d' % off)
    e('v_mov_b32 v5, 1')
    e('ds_write_b32 v4, v5')

def sigmoid_mul(dst, x, arg, t):
    e('v_exp_f32 v%d, v%d' % (t, arg))
    e('s_nop 0')
    e('v_add_f32 v%d, 1.0, v%d' % (t, t))
    e('v_rcp_f32 v%d, v%d' % (t, t))
    e('s_nop 0')
    e('v_mul_f32 v%d, v%d, v%d' % (dst, x, t))

def red_lane_map(s_rhi_cp, vlds, vglb):
    e('v_and_b32 v10, 3, v1')
    e('v_bfe_u32 v11, v1, 2, 3')
    e('s_and_b32 s45, %s, 1' % s_rhi_cp)
    e('s_lshl_b32 s45, s45, 3')
    e('v_add_u32 v11, s45, v11')
    e('v_lshrrev_b32 v9, 5, v1')
    e('s_and_b32 s45, %s, 2' % s_rhi_cp)
    e('v_add_u32 v9, s45, v9')
    e('v_lshlrev_b32 v%d, 4, v11' % vlds)
    e('v_lshl_add_u32 v%d, v10, 2, v%d' % (vlds, vlds))
    e('v_lshl_add_u32 v%d, v9, 9, v%d' % (vlds, vlds))
    e('v_lshlrev_b32 v%d, 6, v11' % vglb)
    e('v_lshl_add_u32 v%d, v9, 4, v%d' % (vglb, vglb))

def csync_wait():
    if OPT['csync']:
        top = uid('L_cs'); done = uid('L_csd')
        e('s_mov_b32 s%d, 0' % S_SPIN)
        e('v_mov_b32 v4, %d' % (NONCE + 16))
        lab(top)
        e('ds_read_b32 v5, v4')
        e('s_waitcnt lgkmcnt(0)')
        e('v_readfirstlane_b32 s44, v5')
        e('s_cmp_ge_u32 s44, 8')
        e('s_cbranch_scc1 %s' % done)
        e('s_add_u32 s%d, s%d, 1' % (S_SPIN, S_SPIN))
        e('s_cmp_ge_u32 s%d, %d' % (S_SPIN, SPIN_MAX * 20))
        e('s_cbranch_scc1 %s' % done)
        e('s_sleep 1')
        e('s_branch %s' % top)
        lab(done)

def late_loads():
    csync_wait()
    e('s_cmp_ge_u32 s%d, 4' % S_WAVE)
    e('s_cselect_b32 s44, 1, 0')
    e('s_cmp_lt_u32 s2, 224')
    e('s_cselect_b32 s45, 1, 0')
    e('s_and_b32 s57, s44, s45')
    e('s_cmp_lg_u32 s57, 0')
    e('s_cselect_b64 exec, -1, 0')
    load_block(T2, S_WDB, 2048, 5)
    e('s_cmp_ge_u32 s2, 128')
    e('s_cselect_b64 exec, -1, 0')
    load_block(T1, S_T1, 2048, 4)
    e('s_mov_b64 exec, -1')

e('s_cmp_ge_u32 s2, 256')
e('s_cbranch_scc1 L_end')
stamp(0)
e('s_load_dwordx16 s[4:19], s[0:1], 0')
e('s_load_dwordx8 s[20:27], s[0:1], 64')
e('v_and_b32 v1, 63, v0')
e('v_lshrrev_b32 v2, 4, v1')
e('v_and_b32 v3, 15, v1')
e('v_lshrrev_b32 v4, 6, v0')
e('s_mov_b32 s%d, 0x05040100' % S_SEL0)
e('v_readfirstlane_b32 s%d, v4' % S_WAVE)
e('s_mov_b32 s%d, 0x07060302' % S_SEL1)
e('s_waitcnt lgkmcnt(0)')

if OPT['pref']:
    cmt('---- code prefetch into L2 (wave 7 of the first 16 WGs)')
    e('s_cmp_lg_u32 s%d, 7' % S_WAVE)
    e('s_cbranch_scc1 L_nopref')
    e('s_cmp_ge_u32 s2, 16')
    e('s_cbranch_scc1 L_nopref')
    e('s_getpc_b64 s[44:45]')
    e('v_lshlrev_b32 v4, 4, v1')
    e('PREFETCH_PLACEHOLDER')
    lab('L_nopref')

e('s_or_b32 s44, s2, s%d' % S_WAVE)
e('s_cmp_lg_u32 s44, 0')
e('s_cbranch_scc1 L_nononce')
e('s_memrealtime s[44:45]')
e('s_waitcnt lgkmcnt(0)')
e('s_or_b32 s44, s44, 1')
e('v_mov_b32 v4, s44')
e('v_mov_b32 v5, 0')
e('s_mov_b64 exec, 1')
e('global_store_dword v5, v4, %s sc1' % sr(S_DBG))
e('s_mov_b64 exec, -1')
lab('L_nononce')

e('s_sub_u32 s58, s%d, 1' % S_WAVE)
e('s_cmp_ge_u32 s58, 4')
e('s_cbranch_scc1 L_nox')
e('s_lshl_b32 s44, s58, 11')
e('v_lshlrev_b32 v4, 4, v1')
e('v_add_u32 v4, s44, v4')
e('global_load_dwordx4 %s, v4, %s' % (vr(TMP), sr(S_X)))
e('global_load_dwordx4 %s, v4, %s offset:1024' % (vr(TMP + 4), sr(S_X)))
lab('L_nox')

e('s_cmp_ge_u32 s2, 128')
e('s_cbranch_scc1 L_t1wo')
e('s_lshr_b32 s44, s2, 5')
e('s_lshl_b32 s44, s44, 8')
e('s_lshl_b32 s45, s%d, 5' % S_WAVE)
e('s_add_u32 s44, s44, s45')
e('s_lshl_b32 s46, s44, 13')
e('s_and_b32 s45, s2, 31')
e('s_lshl_b32 s45, s45, 8')
e('s_add_u32 s46, s46, s45')
add64(S_T1, S_WQ, 46)
e('s_mov_b32 s%d, 8192' % S_RS1)
e('s_mov_b32 s47, s44')
e('s_branch L_t1done')
lab('L_t1wo')
e('s_sub_u32 s44, s2, 128')
e('s_lshr_b32 s45, s44, 1')
e('s_lshl_b32 s45, s45, 6')
e('s_lshr_b32 s46, s%d, 2' % S_WAVE)
e('s_lshl_b32 s46, s46, 5')
e('s_add_u32 s45, s45, s46')
e('s_lshl_b32 s45, s45, 11')
e('s_and_b32 s46, s44, 1')
e('s_lshl_b32 s46, s46, 10')
e('s_add_u32 s45, s45, s46')
e('s_and_b32 s46, s%d, 3' % S_WAVE)
e('s_lshl_b32 s46, s46, 8')
e('s_add_u32 s45, s45, s46')
add64(S_T1, S_WO, 45)
e('s_mov_b32 s%d, 2048' % S_RS1)
e('s_mov_b32 s47, 0')
lab('L_t1done')
e('s_cmp_ge_u32 s2, 112')
e('s_cselect_b32 s48, 1, 0')
e('s_mul_i32 s44, s48, 112')
e('s_sub_u32 s44, s2, s44')
e('s_mul_i32 s45, s44, 2341')
e('s_lshr_b32 s49, s45, 16')
e('s_mul_i32 s45, s49, 28')
e('s_sub_u32 s50, s44, s45')
e('s_lshl_b32 s44, s49, 8')
e('s_lshl_b32 s45, s%d, 5' % S_WAVE)
e('s_add_u32 s51, s44, s45')
e('s_mul_i32 s44, s51, 7168')
e('s_lshl_b32 s45, s50, 8')
e('s_add_u32 s44, s44, s45')
e('s_cmp_eq_u32 s48, 0')
e('s_cselect_b32 s52, s%d, s%d' % (S_WG, S_WU))
e('s_cselect_b32 s53, s%d, s%d' % (S_WG + 1, S_WU + 1))
add64(S_T2, 52, 44)
e('s_lshl_b32 s44, s2, 17')
e('s_lshl_b32 s45, s%d, 14' % S_WAVE)
e('s_add_u32 s44, s44, s45')
add64(S_KB, S_K, 44)
add64(S_VB, S_V, 44)
e('s_lshr_b32 s44, s2, 2')
e('s_lshl_b32 s44, s44, 6')
e('s_lshr_b32 s45, s%d, 1' % S_WAVE)
e('s_and_b32 s45, s45, 1')
e('s_lshl_b32 s45, s45, 5')
e('s_add_u32 s44, s44, s45')
e('s_lshl_b32 s44, s44, 11')
e('s_and_b32 s45, s2, 3')
e('s_lshl_b32 s45, s45, 9')
e('s_add_u32 s44, s44, s45')
e('s_and_b32 s45, s%d, 1' % S_WAVE)
e('s_lshl_b32 s45, s45, 8')
e('s_add_u32 s44, s44, s45')
add64(S_WDB, S_WD, 44)

e('s_cmp_ge_u32 s58, 4')
e('s_cbranch_scc1 L_noln')
e('s_waitcnt vmcnt(0)')
X = TMP + 8
for i in range(8):
    e('v_lshlrev_b32 v%d, 16, v%d' % (X + 2 * i, TMP + i))
    e('v_and_b32 v%d, 0xffff0000, v%d' % (X + 2 * i + 1, TMP + i))
e('v_add_f32 v4, v%d, v%d' % (X, X + 1))
for i in range(2, 16):
    e('v_add_f32 v4, v4, v%d' % (X + i))
row_allreduce('add', 4)
xrow_allreduce('add', 4, 5)
e('v_mul_f32 v4, 0x3a800000, v4')
e('v_sub_f32 v5, v%d, v4' % X)
e('v_mul_f32 v6, v5, v5')
for i in range(1, 16):
    e('v_sub_f32 v5, v%d, v4' % (X + i))
    e('v_fmac_f32 v6, v5, v5')
row_allreduce('add', 6)
xrow_allreduce('add', 6, 5)
e('v_mul_f32 v6, 0x3a800000, v6')
bf16_round(4, 4)
bf16_round(6, 6)
e('v_add_f32 v6, %s, v6' % f32(1e-5))
bf16_round(6, 6)
e('v_sqrt_f32 v6, v6')
e('s_nop 0')
bf16_round(6, 6)
e('v_rcp_f32 v7, v6')
e('s_nop 0')
for i in range(16):
    e('v_sub_f32 v5, v%d, v4' % (X + i))
    bf16_round(5, 5)
    e('v_mul_f32 v8, v5, v7')
    e('v_fma_f32 v9, -v8, v6, v5')
    e('v_fma_f32 v%d, v9, v7, v8' % (X + i))
for i in range(8):
    e('v_cvt_pk_bf16_f32 v%d, v%d, v%d' % (TMP + i, X + 2 * i, X + 2 * i + 1))
e('s_lshl_b32 s44, s58, 11')
e('v_lshlrev_b32 v4, 4, v1')
e('v_add_u32 v4, s44, v4')
e('ds_write_b128 v4, %s offset:%d' % (vr(TMP), XN))
e('ds_write_b128 v4, %s offset:%d' % (vr(TMP + 4), XN + 1024))
lab('L_noln')

e('s_cmp_lt_u32 s2, 128')
e('s_cselect_b64 exec, -1, 0')
load_block(T1, S_T1, 's%d' % S_RS1, 4)
e('s_cmp_lt_u32 s2, 224')
e('s_cselect_b64 exec, -1, 0')
load_block(T2, S_T2, 7168, 5)
e('s_cmp_ge_u32 s%d, 2' % S_WAVE)
e('s_cselect_b64 exec, -1, 0')
load_K(6, 0, NKE)
e('s_mov_b64 exec, -1')

e('s_cmp_lg_u32 s%d, 0' % S_WAVE)
e('s_cbranch_scc1 L_noclr')
e('v_mov_b32 v4, %d' % NONCE)
e('v_mov_b32 v6, 0')
e('v_mov_b32 v7, 0')
e('ds_write_b64 v4, v[6:7] offset:8')
e('ds_write_b64 v4, v[6:7] offset:16')
lab('L_noclr')
stamp(1)
e('s_waitcnt lgkmcnt(0)')
e('s_barrier')
stamp(2)

e('v_and_b32 v4, 3, v3')
e('v_lshlrev_b32 v4, 11, v4')
e('v_lshl_add_u32 v4, v2, 4, v4')
e('s_lshl_b32 s44, s%d, 11' % S_WAVE)
e('v_lshlrev_b32 v6, 5, v3')
e('v_add_u32 v6, s44, v6')
e('s_cmp_ge_u32 s2, 128')
e('s_cbranch_scc1 L_noq')
e('s_lshl_b32 s44, s47, 1')
e('v_add_u32 v5, s44, v4')
e('ds_read_b128 %s, v5 offset:%d' % (vr(AF), XN))
e('s_waitcnt vmcnt(%d) lgkmcnt(0)' % (8 + NKE))
gemv_block(T1, AF, VV, False)
e('v_add_u32 v7, %d, v6' % P1)
write_part(VV, False, 7, '0xffff', 256)
lab('L_noq')
e('s_cmp_ge_u32 s2, 224')
e('s_cbranch_scc1 L_nogu')
e('s_lshl_b32 s44, s51, 1')
e('v_add_u32 v5, s44, v4')
e('ds_read_b128 %s, v5 offset:%d' % (vr(AF), XN))
e('s_waitcnt vmcnt(%d) lgkmcnt(0)' % NKE)
gemv_block(T2, AF, VV + 32, False)
e('v_add_u32 v7, %d, v6' % P2)
write_part(VV + 32, False, 7, '0xffff', 256)
lab('L_nogu')

e('s_cmp_lg_u32 s%d, 0' % S_WAVE)
e('s_cbranch_scc1 L_nononce2')
e('s_mov_b32 s%d, 0' % S_SPIN)
e('v_mov_b32 v5, 0')
lab('L_noncepoll')
e('global_load_dword v4, v5, %s sc1' % sr(S_DBG))
e('s_waitcnt vmcnt(0)')
e('v_readfirstlane_b32 s44, v4')
e('s_cmp_lg_u32 s44, 0')
e('s_cbranch_scc1 L_noncegot')
e('s_add_u32 s%d, s%d, 1' % (S_SPIN, S_SPIN))
e('s_cmp_ge_u32 s%d, %d' % (S_SPIN, SPIN_MAX))
e('s_cbranch_scc1 L_noncegot')
e('s_sleep 1')
e('s_branch L_noncepoll')
lab('L_noncegot')
e('v_mov_b32 v5, %d' % NONCE)
e('ds_write_b32 v5, v4')
lab('L_nononce2')
stamp(3)
e('s_waitcnt lgkmcnt(0)')
e('s_barrier')
e('v_mov_b32 v5, %d' % NONCE)
e('ds_read_b32 v4, v5')
stamp(4)

e('v_mov_b32 v%d, 0xff' % VFF)
e('s_waitcnt lgkmcnt(0)')
e('v_readfirstlane_b32 s%d, v4' % S_TAG)
e('s_nop 3')
e('s_and_b32 s%d, s%d, 0xff' % (S_TG, S_TAG))
e('s_bfe_u32 s%d, s%d, 0x80008' % (S_TG + 1, S_TAG))
e('s_bfe_u32 s%d, s%d, 0x80010' % (S_TG + 2, S_TAG))
e('s_lshr_b32 s%d, s%d, 24' % (S_TG + 3, S_TAG))
e('s_cmp_lt_u32 s%d, 4' % S_WAVE)
e('s_cbranch_scc1 L_pubdone')
e('s_and_b32 s44, s%d, 1' % S_WAVE)
e('s_lshl_b32 s44, s44, 1')
e('v_lshrrev_b32 v6, 5, v1')
e('v_add_u32 v6, s44, v6')
e('v_and_b32 v7, 31, v1')
e('v_lshlrev_b32 v7, 4, v7')
e('s_cmp_lt_u32 s%d, 6' % S_WAVE)
e('s_cbranch_scc0 L_pubgu')
e('s_cmp_ge_u32 s2, 128')
e('s_cbranch_scc1 L_pubdone')
e('s_mov_b32 s45, %d' % P1)
e('s_lshr_b32 s46, s2, 5')
e('s_lshl_b32 s46, s46, 16')
e('s_and_b32 s54, s2, 31')
e('s_lshl_b32 s54, s54, 9')
e('s_add_u32 s46, s46, s54')
e('s_add_u32 s46, s46, %d' % QP)
e('s_mov_b32 s55, 16384')
e('s_branch L_pubgo')
lab('L_pubgu')
e('s_cmp_ge_u32 s2, 224')
e('s_cbranch_scc1 L_pubdone')
e('s_mov_b32 s45, %d' % P2)
e('s_lshl_b32 s46, s48, 2')
e('s_add_u32 s46, s46, s49')
e('s_mul_i32 s46, s46, %d' % (4 * 14336))
e('s_lshl_b32 s54, s50, 9')
e('s_add_u32 s46, s46, s54')
e('s_add_u32 s46, s46, %d' % GP)
e('s_mov_b32 s55, 14336')
lab('L_pubgo')
e('v_lshl_add_u32 v4, v6, 9, v7')
e('v_add_u32 v4, s45, v4')
for v in range(8):
    e('ds_read_b128 %s, v4 offset:%d' % (vr(TMP + 4 * v), v * 2048))
e('v_mul_u32_u24 v5, s55, v6')
e('v_add3_u32 v5, v5, v7, s46')
e('s_waitcnt lgkmcnt(0)')
for k in range(4):
    e('v_add_f32 v%d, v%d, v%d' % (8 + k, TMP + k, TMP + 4 + k))
for v in range(2, 8):
    for k in range(4):
        e('v_add_f32 v%d, v%d, v%d' % (8 + k, 8 + k, TMP + 4 * v + k))
addtag([8, 9, 10, 11])
e('global_store_dwordx4 v5, v[8:11], %s sc1' % sr(S_WS))
lab('L_pubdone')

e('s_cmp_ge_u32 s%d, 2' % S_WAVE)
e('s_cbranch_scc1 L_bulk')
THR[0] = OPT['thrg']
load_K(6, 0, 16)
if not OPT['gq']:
    load_V(6)
csync_inc()
THR[0] = 0
e('s_cmp_eq_u32 s%d, 1' % S_WAVE)
e('s_cbranch_scc1 L_hgather')
e('s_lshr_b32 s44, s2, 4')
e('s_lshl_b32 s44, s44, 12')
e('s_add_u32 s44, s44, %d' % QP)
e('v_lshlrev_b32 v4, 4, v1')
e('v_add_u32 v4, s44, v4')
def _q():
    for ks in range(OPT['qn']):
        e('v_add_u32 v5, %d, v4' % (ks * 65536))
        for i in range(4):
            e('global_load_dwordx4 %s, v5, %s offset:%d sc1' % (vr(T1 + 16 * ks + 4 * i), sr(S_WS), i * 1024))
if not OPT['skipq']:
    spin_loop(_q, [T1 + 4 * i for i in range(16)], 8, 10, sleep=4)
untag([T1 + 4 * i for i in range(16)])
e('v_lshrrev_b32 v5, 5, v1')
e('v_mul_u32_u24 v5, %d, v5' % QLS)
e('v_and_b32 v6, 31, v1')
e('v_lshl_add_u32 v5, v6, 3, v5')
for i in range(4):
    for k in range(4):
        d = TMP + 4 * i + k
        e('v_add_f32 v%d, v%d, v%d' % (d, T1 + 4 * i + k, T1 + 16 + 4 * i + k))
        e('v_add_f32 v%d, v%d, v%d' % (d, d, T1 + 32 + 4 * i + k))
        e('v_add_f32 v%d, v%d, v%d' % (d, d, T1 + 48 + 4 * i + k))
    e('v_cvt_pk_bf16_f32 v6, v%d, v%d' % (TMP + 4 * i, TMP + 4 * i + 1))
    e('v_cvt_pk_bf16_f32 v7, v%d, v%d' % (TMP + 4 * i + 2, TMP + 4 * i + 3))
    e('ds_write_b64 v5, v[6:7] offset:%d' % (QL + 2 * QLS * i))
lds_flag_set(NONCE + 8)
stamp(5)
e('s_branch %s' % ('L_vld' if OPT['gq'] else 'L_late_ld'))

lab('L_hgather')
e('s_cmp_ge_u32 s2, 224')
e('s_cbranch_scc1 %s' % ('L_vld' if OPT['gq'] else 'L_late_ld'))
e('s_lshr_b32 s44, s2, 2')
e('s_lshl_b32 s44, s44, 8')
e('s_add_u32 s44, s44, %d' % GP)
e('v_mul_u32_u24 v4, 14336, v2')
e('v_lshl_add_u32 v4, v3, 4, v4')
e('v_add_u32 v4, s44, v4')
def _h():
    for i in range(8):
        e('v_add_u32 v5, %d, v4' % ((((i & 1) * 4 + (i >> 1)) * 4) * 14336))
        e('global_load_dwordx4 %s, v5, %s sc1' % (vr(T1 + 4 * i), sr(S_WS)))
if not OPT['skiph']:
    spin_loop(_h, [T1 + 4 * i for i in range(8)], 8, 10, sleep=4)
untag([T1 + 4 * i for i in range(8)])
for m in range(2):
    for k in range(4):
        d = TMP + 4 * m + k
        e('v_add_f32 v%d, v%d, v%d' % (d, T1 + 4 * m + k, T1 + 8 + 4 * m + k))
        e('v_add_f32 v%d, v%d, v%d' % (d, d, T1 + 16 + 4 * m + k))
        e('v_add_f32 v%d, v%d, v%d' % (d, d, T1 + 24 + 4 * m + k))
        bf16_round(d, d)
for k in range(4):
    g_ = TMP + k; u_ = TMP + 4 + k
    e('v_mul_f32 v4, v%d, v%d' % (g_, g_))
    e('v_mul_f32 v4, v4, v%d' % g_)
    e('v_mov_b32 v5, %s' % f32(0.044715))
    e('v_fma_f32 v4, v4, v5, v%d' % g_)
    e('v_mul_f32 v4, %s, v4' % f32(-2.0 * 0.7978845608028654 * 1.4426950408889634))
    sigmoid_mul(6, g_, 4, 5)
    bf16_round(6, 6)
    e('v_mul_f32 v%d, v6, v%d' % (g_, u_))
e('v_lshlrev_b32 v5, 3, v1')
e('v_cvt_pk_bf16_f32 v6, v%d, v%d' % (TMP, TMP + 1))
e('v_cvt_pk_bf16_f32 v7, v%d, v%d' % (TMP + 2, TMP + 3))
e('ds_write_b64 v5, v[6:7] offset:%d' % HL)
lds_flag_set(NONCE + 12)
stamp(5)
e('s_branch %s' % ('L_vld' if OPT['gq'] else 'L_late_ld'))

lab('L_bulk')
THR[0] = OPT['thr']
load_K(6, NKE, 16)
lab('L_vld')
load_V(6)
csync_inc()
lab('L_late_ld')
if OPT['late'] == 2:
    THR[0] = 0
if OPT['late'] in (0, 2):
    late_loads()
THR[0] = 0
stamp(6)
NKR = 16 - NKE

lds_flag_wait(NONCE + 8)
stamp(7)
QF = TMP
SV = TMP + 16
e('v_and_b32 v4, 7, v3')
e('v_mul_u32_u24 v4, %d, v4' % QLS)
e('v_lshl_add_u32 v4, v2, 4, v4')
for t in range(4):
    e('ds_read_b128 %s, v4 offset:%d' % (vr(QF + 4 * t), QL + 64 * t))
LX = 16 if OPT['late'] in (0, 2) else 0
e('s_waitcnt vmcnt(%d) lgkmcnt(0)' % (16 + LX))
stamp(8)
for T in range(4):
    for t in range(4):
        e('v_mfma_f32_16x16x32_bf16 %s, %s, %s, %s' % (vr(SV + 4 * T), ar(16 * T + 4 * t), vr(QF + 4 * t), '0' if t == 0 else vr(SV + 4 * T)))
e('s_nop 7')
e('s_mov_b32 s44, %s' % f32(128 ** -0.5))
for i in range(0, 16, 2):
    e('v_cvt_pk_bf16_f32 v4, v%d, v%d' % (SV + i, SV + i + 1))
    e('v_lshlrev_b32 v5, 16, v4')
    e('v_and_b32 v6, 0xffff0000, v4')
    e('v_mul_f32 v5, s44, v5')
    e('v_mul_f32 v6, s44, v6')
    e('v_cvt_pk_bf16_f32 v4, v5, v6')
    e('v_lshlrev_b32 v%d, 16, v4' % (SV + i))
    e('v_and_b32 v%d, 0xffff0000, v4' % (SV + i + 1))
e('v_max3_f32 v8, v%d, v%d, v%d' % (SV, SV + 1, SV + 2))
for i in range(3, 15, 2):
    e('v_max3_f32 v8, v8, v%d, v%d' % (SV + i, SV + i + 1))
e('v_max_f32 v8, v8, v%d' % (SV + 15))
xrow_allreduce('max', 8, 5)
e('s_mov_b32 s44, 0x%x' % LOG2E)
e('v_mul_f32 v5, s44, v8')
for i in range(16):
    e('v_fma_f32 v%d, v%d, s44, -v5' % (SV + i, SV + i))
    e('v_exp_f32 v%d, v%d' % (SV + i, SV + i))
e('s_nop 0')
e('v_add_f32 v9, v%d, v%d' % (SV, SV + 1))
for i in range(2, 16):
    e('v_add_f32 v9, v9, v%d' % (SV + i))
xrow_allreduce('add', 9, 5)
for i in range(8):
    e('v_cvt_pk_bf16_f32 v%d, v%d, v%d' % (PREG + i, SV + 2 * i, SV + 2 * i + 1))
e('s_waitcnt vmcnt(%d)' % (8 + LX))
gemv_block(VV, PREG, 0, True, first=True)
e('s_waitcnt vmcnt(%d)' % LX)
gemv_block(VV + 32, PREG + 4, 0, True, first=False)
if OPT['late'] == 3:
    late_loads()
e('s_lshl_b32 s44, s%d, 6' % S_WAVE)
e('v_lshlrev_b32 v4, 3, v1')
e('v_add_u32 v4, s44, v4')
e('s_mov_b64 exec, 0xff')
e('ds_write_b64 v4, v[8:9] offset:%d' % MLL)
e('s_mov_b64 exec, -1')
e('s_lshl_b32 s44, s%d, 12' % S_WAVE)
e('s_add_u32 s44, s44, %d' % OV)
e('v_lshlrev_b32 v7, 5, v3')
e('v_lshl_add_u32 v7, v2, 11, v7')
e('v_add_u32 v7, s44, v7')
write_part(0, True, 7, '0xffffffff', 512)
e('s_waitcnt lgkmcnt(0)')
e('s_barrier')
stamp(10)

e('s_lshl_b32 s44, s%d, 3' % S_WAVE)
e('v_mov_b32 v4, s44')
for v in range(8):
    e('ds_read_b64 %s, v4 offset:%d' % (vr(TMP + 2 * v, 2), MLL + 64 * v))
e('s_lshl_b32 s44, s%d, 9' % S_WAVE)
e('s_add_u32 s44, s44, %d' % OV)
e('v_and_b32 v6, 31, v1')
e('v_lshlrev_b32 v6, 4, v6')
e('v_add_u32 v5, s44, v6')
for v in range(8):
    e('ds_read_b128 %s, v5 offset:%d' % (vr(VV + 4 * v), 4096 * v))
e('s_bfe_u32 s44, s2, 0x20004')
e('s_lshl_b32 s44, s44, 3')
e('s_add_u32 s44, s44, s%d' % S_WAVE)
e('s_lshr_b32 s45, s2, 6')
e('s_and_b32 s46, s2, 15')
e('s_lshl_b32 s54, s44, 15')
e('s_lshl_b32 s55, s45, 12')
e('s_add_u32 s54, s54, s55')
e('s_lshl_b32 s55, s46, 8')
e('s_add_u32 s54, s54, s55')
e('s_add_u32 s54, s54, %d' % OP)
e('v_bfe_u32 v7, v1, 4, 1')
e('v_lshlrev_b32 v7, 14, v7')
e('v_lshl_add_u32 v7, v3, 4, v7')
e('v_add_u32 v%d, s54, v7' % (TMP + 16))
e('s_lshl_b32 s44, s44, 2')
e('s_add_u32 s44, s44, s45')
e('s_lshl_b32 s44, s44, 8')
e('s_lshl_b32 s46, s46, 4')
e('s_add_u32 s44, s44, s46')
e('s_add_u32 s44, s44, %d' % ML)
e('v_mov_b32 v%d, s44' % (TMP + 17))
e('s_waitcnt lgkmcnt(0)')
e('v_max3_f32 v8, v%d, v%d, v%d' % (TMP, TMP + 2, TMP + 4))
e('v_max3_f32 v8, v8, v%d, v%d' % (TMP + 6, TMP + 8))
e('v_max3_f32 v8, v8, v%d, v%d' % (TMP + 10, TMP + 12))
e('v_max_f32 v8, v8, v%d' % (TMP + 14))
e('s_mov_b32 s46, 0x%x' % LOG2E)
for v in range(8):
    e('v_sub_f32 v%d, v%d, v8' % (TMP + 2 * v, TMP + 2 * v))
    e('v_mul_f32 v%d, s46, v%d' % (TMP + 2 * v, TMP + 2 * v))
    e('v_exp_f32 v%d, v%d' % (TMP + 2 * v, TMP + 2 * v))
e('s_nop 0')
for k in range(4):
    e('v_mul_f32 v%d, v%d, v%d' % (4 + k, TMP, VV + k))
e('v_mul_f32 v9, v%d, v%d' % (TMP, TMP + 1))
for v in range(1, 8):
    for k in range(4):
        e('v_fmac_f32 v%d, v%d, v%d' % (4 + k, TMP + 2 * v, VV + 4 * v + k))
    e('v_fmac_f32 v9, v%d, v%d' % (TMP + 2 * v, TMP + 2 * v + 1))
e('v_mov_b32 v10, v8')
e('v_mov_b32 v11, v9')
addtag([4, 5, 6, 7])
addtag([8, 9, 10, 11])
e('s_mov_b32 exec_hi, 0')
e('global_store_dwordx4 v%d, v[4:7], %s sc1' % (TMP + 16, sr(S_WS)))
e('s_mov_b64 exec, 1')
e('global_store_dwordx4 v%d, v[8:11], %s sc1' % (TMP + 17, sr(S_WS)))
e('s_mov_b64 exec, -1')
stamp(11)
if OPT['late'] == 1:
    late_loads()
e('s_cmp_eq_u32 s57, 0')
e('s_cbranch_scc1 L_nodown')
lds_flag_wait(NONCE + 12)
e('s_lshr_b32 s44, s%d, 1' % S_WAVE)
e('s_and_b32 s44, s44, 1')
e('s_lshl_b32 s44, s44, 6')
e('v_and_b32 v4, 3, v3')
e('v_lshlrev_b32 v4, 7, v4')
e('v_lshl_add_u32 v4, v2, 4, v4')
e('v_add_u32 v4, s44, v4')
e('ds_read_b128 %s, v4 offset:%d' % (vr(AF), HL))
e('s_waitcnt vmcnt(%d) lgkmcnt(0)' % (8 if OPT['late'] == 1 else 10))
gemv_block(T2, AF, T2, False)
e('s_sub_u32 s44, s%d, 4' % S_WAVE)
e('s_lshl_b32 s44, s44, 11')
e('s_add_u32 s44, s44, %d' % P3)
e('v_lshlrev_b32 v7, 5, v3')
e('v_add_u32 v7, s44, v7')
write_part(T2, False, 7, '0xffff', 256)
lab('L_nodown')

e('s_cmp_ge_u32 s2, 128')
e('s_cbranch_scc1 L_wo')
e('s_waitcnt lgkmcnt(0)')
e('s_barrier')
e('s_cmp_ge_u32 s2, 224')
e('s_cbranch_scc1 L_nodpubA')
e('s_cmp_ge_u32 s%d, 4' % S_WAVE)
e('s_cbranch_scc1 L_nodpubA')
e('s_lshl_b32 s46, s%d, 9' % S_WAVE)
e('v_lshrrev_b32 v6, 5, v1')
e('v_lshlrev_b32 v6, 11, v6')
e('v_and_b32 v7, 31, v1')
e('v_lshl_add_u32 v6, v7, 4, v6')
e('v_add_u32 v6, s46, v6')
e('ds_read_b128 v[12:15], v6 offset:%d' % P3)
e('ds_read_b128 v[16:19], v6 offset:%d' % (P3 + 4096))
e('s_lshl_b32 s44, s%d, 18' % S_WAVE)
e('s_and_b32 s45, s2, 3')
e('s_lshl_b32 s45, s45, 16')
e('s_add_u32 s44, s44, s45')
e('s_lshr_b32 s45, s2, 2')
e('s_lshl_b32 s45, s45, 6')
e('s_add_u32 s44, s44, s45')
e('s_add_u32 s44, s44, %d' % DP)
e('v_lshrrev_b32 v7, 2, v1')
e('v_lshlrev_b32 v7, 12, v7')
e('v_and_b32 v5, 3, v1')
e('v_lshl_add_u32 v7, v5, 4, v7')
e('v_add_u32 v7, s44, v7')
e('s_waitcnt lgkmcnt(0)')
for k in range(4):
    e('v_add_f32 v%d, v%d, v%d' % (12 + k, 12 + k, 16 + k))
addtag([12, 13, 14, 15])
e('global_store_dwordx4 v7, v[12:15], %s sc1' % sr(S_WS))
lab('L_nodpubA')
e('s_branch L_final')
lab('L_wo')
e('s_sub_u32 s44, s2, 128')
e('s_lshr_b32 s45, s44, 2')
e('s_lshr_b32 s46, s45, 3')
e('s_and_b32 s54, s45, 7')
e('s_lshr_b32 s55, s44, 1')
e('s_and_b32 s55, s55, 1')
e('s_lshr_b32 s56, s%d, 1' % S_WAVE)
e('s_and_b32 s57, s%d, 1' % S_WAVE)
e('s_lshl_b32 s44, s45, 15')
e('s_lshl_b32 s46, s55, 14')
e('s_add_u32 s44, s44, s46')
e('s_lshl_b32 s46, s56, 12')
e('s_add_u32 s44, s44, s46')
e('s_lshl_b32 s46, s57, 7')
e('s_add_u32 s44, s44, s46')
e('s_add_u32 s44, s44, %d' % OP)
e('v_lshrrev_b32 v6, 3, v1')
e('v_and_b32 v7, 7, v1')
e('v_lshlrev_b32 v4, 8, v6')
e('v_lshl_add_u32 v4, v7, 4, v4')
e('v_add_u32 v4, s44, v4')
e('s_lshl_b32 s44, s45, 2')
e('s_add_u32 s44, s44, s56')
e('s_lshl_b32 s44, s44, 8')
e('s_add_u32 s44, s44, %d' % ML)
e('v_lshlrev_b32 v5, 4, v6')
e('v_add_u32 v5, s44, v5')
e('s_waitcnt vmcnt(0)')
transpose_block(T1)
spin_each([lambda: e('global_load_dwordx4 %s, v5, %s sc1' % (vr(VV + 8), sr(S_WS))),
           lambda: e('global_load_dwordx4 %s, v5, %s offset:128 sc1' % (vr(VV + 12), sr(S_WS))),
           lambda: e('global_load_dwordx4 %s, v4, %s sc1' % (vr(VV), sr(S_WS))),
           lambda: e('global_load_dwordx4 %s, v4, %s offset:2048 sc1' % (vr(VV + 4), sr(S_WS)))],
          [VV + 8, VV + 12, VV, VV + 4], 8, 10, sleep=OPT['slp'])
stamp(12)
CT = VV + 16
untag([VV, VV + 4, VV + 8, VV + 12])
def red3(op, v, t):
    e('s_nop 1')
    e('v_%s_f32_dpp v%d, v%d, v%d row_ror:8 row_mask:0xf bank_mask:0xf' % (op, v, v, v))
    xrow_allreduce(op, v, t)
e('v_max_f32 v8, v%d, v%d' % (VV + 8, VV + 12))
red3('max', 8, 5)
e('s_mov_b32 s44, 0x%x' % LOG2E)
e('v_sub_f32 v9, v%d, v8' % (VV + 8))
e('v_sub_f32 v10, v%d, v8' % (VV + 12))
e('v_mul_f32 v9, s44, v9')
e('v_mul_f32 v10, s44, v10')
e('v_exp_f32 v9, v9')
e('v_exp_f32 v10, v10')
e('s_nop 0')
e('v_mul_f32 v8, v9, v%d' % (VV + 9))
e('v_fmac_f32 v8, v10, v%d' % (VV + 13))
for k in range(4):
    e('v_mul_f32 v%d, v9, v%d' % (CT + k, VV + k))
    e('v_fmac_f32 v%d, v10, v%d' % (CT + k, VV + 4 + k))
R5 = [8, CT, CT + 1, CT + 2, CT + 3]
e('s_nop 1')
for rg in R5:
    e('v_add_f32_dpp v%d, v%d, v%d row_ror:8 row_mask:0xf bank_mask:0xf' % (rg, rg, rg))
xrow_batch('add', R5, [CT + 8 + k for k in range(5)])
e('v_rcp_f32 v10, v8')
e('s_nop 0')
e('v_fma_f32 v11, -v8, v10, 1.0')
e('v_fma_f32 v10, v11, v10, v10')
for k in range(4):
    e('v_mul_f32 v%d, v10, v%d' % (CT + k, CT + k))
e('v_cvt_pk_bf16_f32 v8, v%d, v%d' % (CT, CT + 1))
e('v_cvt_pk_bf16_f32 v9, v%d, v%d' % (CT + 2, CT + 3))
e('s_lshl_b32 s44, s%d, 6' % S_WAVE)
e('v_lshlrev_b32 v4, 3, v7')
e('v_add_u32 v4, s44, v4')
e('s_mov_b64 exec, 0xff')
e('ds_write_b64 v4, v[8:9] offset:%d' % OL)
e('s_mov_b64 exec, -1')
e('s_lshr_b32 s44, s%d, 2' % S_WAVE)
e('s_lshl_b32 s44, s44, 6')
e('v_and_b32 v4, 3, v3')
e('v_lshlrev_b32 v4, 7, v4')
e('v_lshl_add_u32 v4, v2, 4, v4')
e('v_add_u32 v4, s44, v4')
e('s_lshl_b32 s44, s%d, 11' % S_WAVE)
e('s_add_u32 s44, s44, %d' % P4)
e('v_lshlrev_b32 v7, 5, v3')
e('v_add_u32 v7, s44, v7')
e('s_waitcnt lgkmcnt(0)')
e('s_barrier')
stamp(13)
e('ds_read_b128 %s, v4 offset:%d' % (vr(AF), OL))
e('s_waitcnt lgkmcnt(0)')
for c in range(8):
    e('v_mfma_f32_16x16x32_bf16 %s, %s, %s, 0' % (ar(4 * c), vr(AF), vr(TMP + 4 * c)))
write_part(0, True, 7, '0xffff', 256)
e('s_cmp_ge_u32 s2, 224')
e('s_cbranch_scc1 L_nodpubB')
e('s_cmp_ge_u32 s%d, 4' % S_WAVE)
e('s_cbranch_scc1 L_nodpubB')
e('s_lshl_b32 s46, s%d, 9' % S_WAVE)
e('v_lshrrev_b32 v6, 5, v1')
e('v_lshlrev_b32 v6, 11, v6')
e('v_and_b32 v7, 31, v1')
e('v_lshl_add_u32 v6, v7, 4, v6')
e('v_add_u32 v6, s46, v6')
e('ds_read_b128 v[12:15], v6 offset:%d' % P3)
e('ds_read_b128 v[16:19], v6 offset:%d' % (P3 + 4096))
e('s_lshl_b32 s44, s%d, 18' % S_WAVE)
e('s_and_b32 s45, s2, 3')
e('s_lshl_b32 s45, s45, 16')
e('s_add_u32 s44, s44, s45')
e('s_lshr_b32 s45, s2, 2')
e('s_lshl_b32 s45, s45, 6')
e('s_add_u32 s44, s44, s45')
e('s_add_u32 s44, s44, %d' % DP)
e('v_lshrrev_b32 v7, 2, v1')
e('v_lshlrev_b32 v7, 12, v7')
e('v_and_b32 v5, 3, v1')
e('v_lshl_add_u32 v7, v5, 4, v7')
e('v_add_u32 v7, s44, v7')
e('s_waitcnt lgkmcnt(0)')
for k in range(4):
    e('v_add_f32 v%d, v%d, v%d' % (12 + k, 12 + k, 16 + k))
addtag([12, 13, 14, 15])
e('global_store_dwordx4 v7, v[12:15], %s sc1' % sr(S_WS))
lab('L_nodpubB')
e('s_and_b32 s44, s%d, 3' % S_WAVE)
e('s_lshr_b32 s45, s%d, 2' % S_WAVE)
e('s_lshl_b32 s46, s44, 9')
e('s_lshl_b32 s54, s45, 12')
e('s_add_u32 s46, s46, s54')
e('v_lshrrev_b32 v6, 5, v1')
e('v_lshlrev_b32 v6, 11, v6')
e('v_and_b32 v7, 31, v1')
e('v_lshl_add_u32 v6, v7, 4, v6')
e('v_add_u32 v6, s46, v6')
e('s_lshl_b32 s44, s44, 18')
e('s_lshl_b32 s45, s45, 16')
e('s_add_u32 s44, s44, s45')
e('s_sub_u32 s46, s2, 128')
e('s_lshr_b32 s45, s46, 1')
e('s_lshl_b32 s45, s45, 6')
e('s_add_u32 s44, s44, s45')
e('s_and_b32 s46, s46, 1')
e('s_lshl_b32 s46, s46, 17')
e('s_add_u32 s44, s44, s46')
e('s_add_u32 s44, s44, %d' % SP)
e('v_lshrrev_b32 v5, 2, v1')
e('v_lshlrev_b32 v5, 12, v5')
e('v_and_b32 v4, 3, v1')
e('v_lshl_add_u32 v5, v4, 4, v5')
e('v_add_u32 v5, s44, v5')
e('s_waitcnt lgkmcnt(0)')
e('s_barrier')
e('ds_read_b128 %s, v6 offset:%d' % (vr(TMP), P4))
e('ds_read_b128 %s, v6 offset:%d' % (vr(TMP + 4), P4 + 8192))
e('s_waitcnt lgkmcnt(0)')
for k in range(4):
    e('v_add_f32 v%d, v%d, v%d' % (8 + k, TMP + k, TMP + 4 + k))
addtag([8, 9, 10, 11])
e('global_store_dwordx4 v5, v[8:11], %s sc1' % sr(S_WS))
stamp(14)

lab('L_final')
e('s_cmp_lg_u32 s%d, 0' % S_WAVE)
e('s_cbranch_scc1 L_fin2')
e('s_lshl_b32 s44, s2, 12')
e('v_lshlrev_b32 v4, 4, v1')
e('v_add_u32 v4, s44, v4')
e('v_and_b32 v5, 3, v1')
e('v_lshlrev_b32 v5, 4, v5')
e('s_lshl_b32 s45, s2, 5')
e('v_lshrrev_b32 v6, 1, v5')
e('v_add_u32 v6, s45, v6')
e('global_load_dwordx2 v[16:17], v6, %s' % sr(S_X))
for k in range(4):
    e('v_mov_b32 v%d, s%d' % (VV + 28 + k, S_TG + k))
def mkf(i):
    def f():
        base = (DP + i * 1024) if i < 4 else (SP + (i - 4) * 1024)
        dst = VV + 16 + 4 * i if i < 4 else VV + 4 * (i - 4)
        e('v_add_u32 v5, %d, v4' % base)
        if i == 3:
            e('s_mov_b32 exec_hi, 0')
        e('global_load_dwordx4 %s, v5, %s sc1' % (vr(dst), sr(S_WS)))
        if i == 3:
            e('s_mov_b64 exec, -1')
    return f
spin_each([mkf(i) for i in range(8)], [VV + 16 + 4 * i for i in range(4)] + [VV + 4 * i for i in range(4)], 8, 10, sleep=OPT['slp'])
stamp(9)
untag([VV + 4 * i for i in range(8)])
for k in range(4):
    e('v_add_f32 v%d, v%d, v%d' % (8 + k, VV + k, VV + 4 + k))
    e('v_add_f32 v%d, v%d, v%d' % (12 + k, VV + 16 + k, VV + 20 + k))
for i in range(2, 4):
    for k in range(4):
        e('v_add_f32 v%d, v%d, v%d' % (8 + k, 8 + k, VV + 4 * i + k))
        e('v_add_f32 v%d, v%d, v%d' % (12 + k, 12 + k, VV + 16 + 4 * i + k))
for sh in (8, 4):
    e('s_nop 1')
    for rg in range(8, 16):
        e('v_add_f32_dpp v%d, v%d, v%d row_ror:%d row_mask:0xf bank_mask:0xf' % (rg, rg, rg, sh))
xrow_batch('add', list(range(8, 16)), [TMP + 8 + k for k in range(8)])
e('s_mov_b32 s44, 0x%x' % (LOG2E | 0x80000000))
e('v_lshlrev_b32 v%d, 16, v16' % TMP)
e('v_and_b32 v%d, 0xffff0000, v16' % (TMP + 1))
e('v_lshlrev_b32 v%d, 16, v17' % (TMP + 2))
e('v_and_b32 v%d, 0xffff0000, v17' % (TMP + 3))
for k in range(8):
    bf16_round(8 + k, 8 + k)
A_ = TMP + 8
for k in range(4):
    e('v_mul_f32 v%d, s44, v%d' % (A_ + k, 12 + k))
for k in range(4):
    e('v_exp_f32 v%d, v%d' % (A_ + k, A_ + k))
for k in range(4):
    e('v_add_f32 v%d, 1.0, v%d' % (A_ + k, A_ + k))
for k in range(4):
    e('v_rcp_f32 v%d, v%d' % (A_ + k, A_ + k))
for k in range(4):
    e('v_mul_f32 v%d, v%d, v%d' % (A_ + k, 12 + k, A_ + k))
for k in range(4):
    bf16_round(A_ + k, A_ + k)
for k in range(4):
    e('v_mul_f32 v%d, v%d, v%d' % (A_ + k, 8 + k, A_ + k))
for k in range(4):
    bf16_round(A_ + k, A_ + k)
for k in range(4):
    e('v_add_f32 v%d, v%d, v%d' % (TMP + k, TMP + k, A_ + k))
e('v_cvt_pk_bf16_f32 v12, v%d, v%d' % (TMP, TMP + 1))
e('v_cvt_pk_bf16_f32 v13, v%d, v%d' % (TMP + 2, TMP + 3))
e('s_mov_b64 exec, 0xf')
e('global_store_dwordx2 v6, v[12:13], %s' % sr(S_OUT))
lab('L_fin2')
if OPT['dbg']:
    e('s_cmp_lg_u32 s%d, 0' % S_WAVE)
    e('s_cbranch_scc1 L_end')
    stamp(15)
    e('s_mov_b64 exec, 1')
    e('s_waitcnt lgkmcnt(0)')
    e('v_mov_b32 v5, 0')
    for i in (0, 4, 5, 10, 12, 14, 15):
        e('s_sub_u32 s44, s%d, s%d' % (64 + 2 * i, S_TAG))
        e('s_cmp_gt_u32 s44, 100000')
        e('s_cselect_b32 s44, 0, s44')
        e('v_mov_b32 v4, s44')
        e('global_atomic_umax v5, v4, %s offset:%d' % (sr(S_DBG), 4 * (1 + i) if i < 15 else 60))
if OPT['stamps']:
    stamp(15)
    e('s_mov_b64 exec, 1')
    e('s_waitcnt lgkmcnt(0)')
    e('s_lshl_b32 s44, s2, 3')
    e('s_add_u32 s44, s44, s%d' % S_WAVE)
    e('s_lshl_b32 s44, s44, 6')
    e('s_add_u32 s44, s44, %d' % STAMPS)
    e('v_mov_b32 v5, s44')
    for i in range(16):
        e('v_mov_b32 v4, s%d' % (64 + 2 * i))
        e('global_store_dword v5, v4, %s offset:%d' % (sr(S_WS), 4 * i))
lab('L_end')
e('s_endpgm')

if OPT['pref']:
    import subprocess, re
    body = '\n'.join(x for x in L if 'PREFETCH_PLACEHOLDER' not in x)
    open('_sz.s', 'w').write('.amdgcn_target "amdgcn-amd-amdhsa--gfx950"\n.text\n' + body + '\n')
    subprocess.check_call(['clang', '-x', 'assembler', '-target', 'amdgcn-amd-amdhsa', '-mcpu=gfx950', '-c', '_sz.s', '-o', '_sz.o'])
    out = subprocess.check_output(['llvm-readelf', '-S', '_sz.o']).decode()
    tsz = int(re.search(r'\.text\s+PROGBITS\s+\S+\s+\S+\s+(\S+)', out).group(1), 16)
    nkb = (tsz - 128) // 1024
    print('code bytes', tsz, 'prefetch KB', nkb)
    pl = []
    for i in range(nkb):
        pl.append('    global_load_dwordx4 v[%d:%d], v4, s[44:45]' % (TMP + 28, TMP + 31))
        pl.append('    v_add_u32 v4, 1024, v4')
    idx = L.index('    PREFETCH_PLACEHOLDER')
    L[idx:idx + 1] = pl

hdr = open('cdna_kernels/%s.s.ref' % NAME).read().split('; Override')[0]
src = hdr
src += '; @launch grid=(256,1,1) block=(512,1,1) lds=%d\n' % LDS_BYTES
src += '.amdgcn_target "amdgcn-amd-amdhsa--gfx950"\n.text\n'
src += '.globl %s_kernel\n.p2align 8\n.type %s_kernel,@function\n%s_kernel:\n' % (NAME, NAME, NAME)
src += '\n'.join(L) + '\n'
src += '''.section .rodata,"a"
.p2align 6
.amdhsa_kernel %s_kernel
  .amdhsa_next_free_vgpr 252
  .amdhsa_next_free_sgpr 102
  .amdhsa_accum_offset %d
  .amdhsa_group_segment_fixed_size 0
  .amdhsa_kernarg_size 96
  .amdhsa_user_sgpr_count 2
  .amdhsa_user_sgpr_kernarg_segment_ptr 1
  .amdhsa_system_sgpr_workgroup_id_x 1
.end_amdhsa_kernel
''' % (NAME, NV)
open(OUT, 'w').write(src)
print('wrote', OUT, len(L), 'lines')
```

```python
import sys, struct
def f32(x):
    return '0x%08x' % struct.unpack('<I', struct.pack('<f', x))[0]

NAME = 'recurrent_scan__gqa_block_cached__glu_gated_geglu__decode'
OUT = 'cdna_kernels/%s.s' % NAME

OPT = dict(nt=1, stamps=0, nke=4, pref=1, thr=8, thrg=8, late=3, gq=0, csync=1, dbg=0, fpp=1, nohand=0, nost=0, nold=0, once=0, skipq=0, skiph=0, qn=4, slp=1, each=0, thrv=8, fslp=1)
for a in sys.argv[1:]:
    if '=' in a:
        k, v = a.split('=')
        if k == 'out':
            OUT = v
        else:
            OPT[k] = int(v)

L = []
def e(s):
    if (OPT['nohand'] or OPT['nost']) and s.startswith('global_store_dwordx4') and 'sc1' in s:
        return
    L.append('    ' + s)
def lab(s):
    L.append(s + ':')
def cmt(s):
    L.append('    ; ' + s)
_uid = [0]
def uid(p):
    _uid[0] += 1
    return '%s_%d' % (p, _uid[0])

QP = 0x000000
GP = 0x080000
OP = 0x200000
ML = 0x400000
SP = 0x500000
DP = 0x700000
Q2 = 0x180000
STAMPS = 0x1000000

XN = 0
NONCE = 8192
QL = 8448
QLS = 272
HL = 10752
OL = 11264
MLL = 11776
P1 = 12288
P2 = 28672
P3 = 45056
P4 = 53248
OV = 69632
LDS_BYTES = 102400

T1 = 24
T2 = 56
VV = 88
TMP = 152
NV = 188
PREG = 12
AF = 20
S_X, S_K, S_V, S_WQ, S_WO, S_WG, S_WU, S_WD, S_OUT, S_DBG, S_WS = 4, 6, 8, 10, 12, 16, 18, 20, 22, 24, 26
S_WAVE, S_TAG, S_SEL0, S_SEL1 = 28, 29, 30, 31
S_T1, S_T2, S_KB, S_VB, S_WDB = 32, 34, 36, 38, 40
S_WOB = 42
S_SPIN = 62
S_TG = 96
VFF = 184
LOG2E = 0x3fb8aa3b
SPIN_MAX = 200000
NKE = OPT['nke']

NT = ' nt' if OPT['nt'] else ''

def stamp(i):
    if OPT['stamps'] or OPT['dbg']:
        e('s_memrealtime s[%d:%d]' % (64 + 2 * i, 65 + 2 * i))

def vr(b, n=4):
    return 'v[%d:%d]' % (b, b + n - 1)
def ar(b, n=4):
    return 'a[%d:%d]' % (b, b + n - 1)
def sr(b, n=2):
    return 's[%d:%d]' % (b, b + n - 1)

def add64(dst, base, off_sreg):
    e('s_add_u32 s%d, s%d, s%d' % (dst, base, off_sreg))
    e('s_addc_u32 s%d, s%d, 0' % (dst + 1, base + 1))

THR = [0]
def thr():
    if THR[0]:
        e('s_waitcnt vmcnt(%d)' % (THR[0] - 1))

def load_block(dst, sbase, rs, vtmp):
    if isinstance(rs, int):
        e('v_mul_u32_u24 v%d, %d, v2' % (vtmp, 8 * rs))
    else:
        e('s_lshl_b32 s59, %s, 3' % rs)
        e('v_mul_u32_u24 v%d, s59, v2' % vtmp)
    e('v_lshl_add_u32 v%d, v3, 4, v%d' % (vtmp, vtmp))
    for i in range(8):
        thr()
        e('global_load_dwordx4 %s, v%d, %s%s' % (vr(dst + 4 * i), vtmp, sr(sbase), NT))
        if i < 7:
            e('v_add_u32 v%d, %s, v%d' % (vtmp, str(rs), vtmp))

def load_K(vtmp, lo, hi):
    if lo >= hi:
        return
    e('v_lshlrev_b32 v%d, 8, v3' % vtmp)
    e('v_lshl_add_u32 v%d, v2, 4, v%d' % (vtmp, vtmp))
    cur = 0
    for n in range(lo, hi):
        T, t = n >> 2, n & 3
        if T * 4096 != cur:
            e('v_add_u32 v%d, %d, v%d' % (vtmp, T * 4096 - cur, vtmp))
            cur = T * 4096
        thr()
        e('global_load_dwordx4 %s, v%d, %s offset:%d%s' % (ar(16 * T + 4 * t), vtmp, sr(S_KB), t * 64, NT))

def csync_inc():
    if OPT['csync']:
        e('v_mov_b32 v4, %d' % (NONCE + 16))
        e('v_mov_b32 v5, 1')
        e('s_mov_b64 exec, 1')
        e('ds_add_u32 v4, v5')
        e('s_mov_b64 exec, -1')

def load_V(vtmp):
    e('v_lshlrev_b32 v%d, 10, v2' % vtmp)
    e('v_lshl_add_u32 v%d, v3, 4, v%d' % (vtmp, vtmp))
    e('v_add_u32 v%d, 0x1000, v%d' % (vtmp, vtmp))
    for B in range(2):
        for j in range(8):
            off = (j >> 2) * 4096 - 4096 + (j & 3) * 256
            thr()
            e('global_load_dwordx4 %s, v%d, %s offset:%d%s' % (vr(VV + 32 * B + 4 * j), vtmp, sr(S_VB), off, NT))
        if B == 0:
            e('v_add_u32 v%d, 0x2000, v%d' % (vtmp, vtmp))

def transpose_block(T):
    for c in range(8):
        d = c >> 1
        sel = S_SEL0 if c % 2 == 0 else S_SEL1
        for jj in range(4):
            e('v_perm_b32 v%d, v%d, v%d, s%d' % (TMP + 4 * c + jj, T + 4 * (2 * jj + 1) + d, T + 4 * (2 * jj) + d, sel))

def gemv_block(T, A, acc, agpr, first=True):
    transpose_block(T)
    e('s_nop 1')
    f = ar if agpr else vr
    for c in range(8):
        e('v_mfma_f32_16x16x32_bf16 %s, %s, %s, %s' % (f(acc + 4 * c), vr(A), vr(TMP + 4 * c), '0' if first else f(acc + 4 * c)))

def write_part(acc, agpr, vaddr, nlanes_mask, cstride=None):
    e('s_nop 7')
    for i in range(4):
        for c in range(8):
            if agpr:
                e('v_accvgpr_read_b32 v%d, a%d' % (TMP + 8 * i + c, acc + 4 * c + i))
            else:
                e('v_mov_b32 v%d, v%d' % (TMP + 8 * i + c, acc + 4 * c + i))
    e('s_mov_b32 exec_lo, %s' % nlanes_mask)
    e('s_mov_b32 exec_hi, 0')
    for i in range(4):
        e('ds_write_b128 v%d, %s offset:%d' % (vaddr, vr(TMP + 8 * i), i * 512))
        e('ds_write_b128 v%d, %s offset:%d' % (vaddr, vr(TMP + 8 * i + 4), i * 512 + 16))
    e('s_mov_b64 exec, -1')

def bf16_round(dst, src):
    e('v_cvt_pk_bf16_f32 v%d, v%d, v%d' % (dst, src, src))
    e('v_and_b32 v%d, 0xffff0000, v%d' % (dst, dst))

def row_allreduce(op, v):
    for sh in (8, 4, 2, 1):
        e('s_nop 1')
        e('v_%s_f32_dpp v%d, v%d, v%d row_ror:%d row_mask:0xf bank_mask:0xf' % (op, v, v, v, sh))

def xrow_allreduce(op, v, t):
    e('v_mov_b32 v%d, v%d' % (t, v))
    e('s_nop 1')
    e('v_permlane16_swap_b32 v%d, v%d' % (v, t))
    e('s_nop 1')
    e('v_%s_f32 v%d, v%d, v%d' % (op, v, v, t))
    e('v_mov_b32 v%d, v%d' % (t, v))
    e('s_nop 1')
    e('v_permlane32_swap_b32 v%d, v%d' % (v, t))
    e('s_nop 1')
    e('v_%s_f32 v%d, v%d, v%d' % (op, v, v, t))

def addtag(regs4):
    for k, rg in enumerate(regs4):
        e('v_bfi_b32 v%d, v%d, s%d, v%d' % (rg, VFF, S_TG + (k & 3), rg))

def xrow_batch(op, regs, tmps):
    for rg, t in zip(regs, tmps):
        e('v_mov_b32 v%d, v%d' % (t, rg))
    if len(regs) < 3:
        e('s_nop 1')
    for rg, t in zip(regs, tmps):
        e('v_permlane16_swap_b32 v%d, v%d' % (rg, t))
    for rg, t in zip(regs, tmps):
        e('v_%s_f32 v%d, v%d, v%d' % (op, rg, rg, t))
    for rg, t in zip(regs, tmps):
        e('v_mov_b32 v%d, v%d' % (t, rg))
    if len(regs) < 3:
        e('s_nop 1')
    for rg, t in zip(regs, tmps):
        e('v_permlane32_swap_b32 v%d, v%d' % (rg, t))
    for rg, t in zip(regs, tmps):
        e('v_%s_f32 v%d, v%d, v%d' % (op, rg, rg, t))

def check_tags(quads, vbad, vt):
    first = True
    for q in quads:
        for k in (0, 2):
            if first:
                e('v_xor_b32 v%d, s%d, v%d' % (vbad, S_TG + k, q + k))
                e('v_xor_b32 v%d, s%d, v%d' % (vt, S_TG + k + 1, q + k + 1))
                e('v_or_b32 v%d, v%d, v%d' % (vbad, vbad, vt))
                first = False
            else:
                e('v_xor_b32 v%d, s%d, v%d' % (vt, S_TG + k, q + k))
                e('v_xor_b32 v%d, s%d, v%d' % (vt + 1, S_TG + k + 1, q + k + 1))
                e('v_or3_b32 v%d, v%d, v%d, v%d' % (vbad, vbad, vt, vt + 1))
    e('v_and_b32 v%d, 0xff, v%d' % (vbad, vbad))
    e('v_cmp_ne_u32 vcc, 0, v%d' % vbad)

def spin_loop(body_issue, tagregs, vbad, vt, sleep=2):
    if OPT['nohand'] or OPT['nold']:
        e('s_waitcnt vmcnt(0)')
        return
    if OPT['once']:
        body_issue()
        e('s_waitcnt vmcnt(0)')
        return
    top = uid('L_spin'); done = uid('L_spun')
    e('s_mov_b32 s%d, 0' % S_SPIN)
    lab(top)
    body_issue()
    e('s_waitcnt vmcnt(0)')
    check_tags(tagregs, vbad, vt)
    e('s_nop 1')
    e('s_cbranch_vccz %s' % done)
    e('s_add_u32 s%d, s%d, 1' % (S_SPIN, S_SPIN))
    e('s_cmp_ge_u32 s%d, %d' % (S_SPIN, SPIN_MAX))
    e('s_cbranch_scc1 %s' % done)
    if sleep:
        e('s_sleep %d' % sleep)
    e('s_branch %s' % top)
    lab(done)

def spin_each(issue_fns, quads, vbad, vt, sleep=0):
    if not OPT['each']:
        def body():
            for f in issue_fns:
                f()
        spin_loop(body, quads, vbad, vt, sleep=max(sleep, 0))
        return
    for f in issue_fns:
        f()
    n = len(issue_fns)
    e('s_mov_b32 s%d, 0' % S_SPIN)
    for i, (f, q) in enumerate(zip(issue_fns, quads)):
        top = uid('L_se'); done = uid('L_sed')
        e('s_waitcnt vmcnt(%d)' % (n - 1 - i))
        lab(top)
        check_tags([q], vbad, vt)
        e('s_nop 1')
        e('s_cbranch_vccz %s' % done)
        if OPT['once']:
            e('s_branch %s' % done)
        e('s_add_u32 s%d, s%d, 1' % (S_SPIN, S_SPIN))
        e('s_cmp_ge_u32 s%d, %d' % (S_SPIN, SPIN_MAX))
        e('s_cbranch_scc1 %s' % done)
        if sleep:
            e('s_sleep %d' % sleep)
        f()
        e('s_waitcnt vmcnt(0)')
        e('s_branch %s' % top)
        lab(done)

def untag(quads):
    for q in quads:
        for k in range(4):
            e('v_and_b32 v%d, 0xffffff00, v%d' % (q + k, q + k))

def lds_flag_wait(off):
    top = uid('L_fl'); done = uid('L_fld')
    e('s_mov_b32 s%d, 0' % S_SPIN)
    e('v_mov_b32 v4, %d' % off)
    lab(top)
    e('ds_read_b32 v5, v4')
    e('s_waitcnt lgkmcnt(0)')
    e('v_readfirstlane_b32 s44, v5')
    e('s_cmp_lg_u32 s44, 0')
    e('s_cbranch_scc1 %s' % done)
    e('s_add_u32 s%d, s%d, 1' % (S_SPIN, S_SPIN))
    e('s_cmp_ge_u32 s%d, %d' % (S_SPIN, SPIN_MAX * 20))
    e('s_cbranch_scc1 %s' % done)
    e('s_sleep 1')
    e('s_branch %s' % top)
    lab(done)

def lds_flag_set(off):
    e('s_waitcnt lgkmcnt(0)')
    e('v_mov_b32 v4, %d' % off)
    e('v_mov_b32 v5, 1')
    e('ds_write_b32 v4, v5')

def sigmoid_mul(dst, x, arg, t):
    e('v_exp_f32 v%d, v%d' % (t, arg))
    e('s_nop 0')
    e('v_add_f32 v%d, 1.0, v%d' % (t, t))
    e('v_rcp_f32 v%d, v%d' % (t, t))
    e('s_nop 0')
    e('v_mul_f32 v%d, v%d, v%d' % (dst, x, t))

def red_lane_map(s_rhi_cp, vlds, vglb):
    e('v_and_b32 v10, 3, v1')
    e('v_bfe_u32 v11, v1, 2, 3')
    e('s_and_b32 s45, %s, 1' % s_rhi_cp)
    e('s_lshl_b32 s45, s45, 3')
    e('v_add_u32 v11, s45, v11')
    e('v_lshrrev_b32 v9, 5, v1')
    e('s_and_b32 s45, %s, 2' % s_rhi_cp)
    e('v_add_u32 v9, s45, v9')
    e('v_lshlrev_b32 v%d, 4, v11' % vlds)
    e('v_lshl_add_u32 v%d, v10, 2, v%d' % (vlds, vlds))
    e('v_lshl_add_u32 v%d, v9, 9, v%d' % (vlds, vlds))
    e('v_lshlrev_b32 v%d, 6, v11' % vglb)
    e('v_lshl_add_u32 v%d, v9, 4, v%d' % (vglb, vglb))

def csync_wait():
    if OPT['csync']:
        top = uid('L_cs'); done = uid('L_csd')
        e('s_mov_b32 s%d, 0' % S_SPIN)
        e('v_mov_b32 v4, %d' % (NONCE + 16))
        lab(top)
        e('ds_read_b32 v5, v4')
        e('s_waitcnt lgkmcnt(0)')
        e('v_readfirstlane_b32 s44, v5')
        e('s_cmp_ge_u32 s44, 8')
        e('s_cbranch_scc1 %s' % done)
        e('s_add_u32 s%d, s%d, 1' % (S_SPIN, S_SPIN))
        e('s_cmp_ge_u32 s%d, %d' % (S_SPIN, SPIN_MAX * 20))
        e('s_cbranch_scc1 %s' % done)
        e('s_sleep 1')
        e('s_branch %s' % top)
        lab(done)

def late_loads():
    csync_wait()
    e('s_cmp_ge_u32 s%d, 4' % S_WAVE)
    e('s_cselect_b32 s44, 1, 0')
    e('s_cmp_lt_u32 s2, 224')
    e('s_cselect_b32 s45, 1, 0')
    e('s_and_b32 s57, s44, s45')
    lo = uid('L_llo'); dn = uid('L_lld')
    e('s_cmp_lt_u32 s%d, 4' % S_WAVE)
    e('s_cbranch_scc1 %s' % lo)
    e('s_cmp_lg_u32 s57, 0')
    e('s_cselect_b64 exec, -1, 0')
    load_block(T2, S_WDB, 2048, 5)
    e('s_mov_b64 exec, -1')
    e('s_branch %s' % dn)
    lab(lo)
    load_block(T1, S_WOB, 2048, 4)
    lab(dn)

e('s_cmp_ge_u32 s2, 256')
e('s_cbranch_scc1 L_end')
stamp(0)
e('s_load_dwordx16 s[4:19], s[0:1], 0')
e('s_load_dwordx8 s[20:27], s[0:1], 64')
e('v_and_b32 v1, 63, v0')
e('v_lshrrev_b32 v2, 4, v1')
e('v_and_b32 v3, 15, v1')
e('v_lshrrev_b32 v4, 6, v0')
e('s_mov_b32 s%d, 0x05040100' % S_SEL0)
e('v_readfirstlane_b32 s%d, v4' % S_WAVE)
e('s_mov_b32 s%d, 0x07060302' % S_SEL1)
e('s_waitcnt lgkmcnt(0)')

if OPT['pref']:
    cmt('---- code prefetch into L2 (wave 7 of the first 16 WGs)')
    e('s_cmp_lg_u32 s%d, 7' % S_WAVE)
    e('s_cbranch_scc1 L_nopref')
    e('s_cmp_ge_u32 s2, 16')
    e('s_cbranch_scc1 L_nopref')
    e('s_getpc_b64 s[44:45]')
    e('v_lshlrev_b32 v4, 4, v1')
    e('PREFETCH_PLACEHOLDER')
    lab('L_nopref')

e('s_or_b32 s44, s2, s%d' % S_WAVE)
e('s_cmp_lg_u32 s44, 0')
e('s_cbranch_scc1 L_nononce')
e('s_memrealtime s[44:45]')
e('s_waitcnt lgkmcnt(0)')
e('s_or_b32 s44, s44, 1')
e('v_mov_b32 v4, s44')
e('v_mov_b32 v5, 0')
e('s_mov_b64 exec, 1')
e('global_store_dword v5, v4, %s sc1' % sr(S_DBG))
e('s_mov_b64 exec, -1')
lab('L_nononce')

e('s_sub_u32 s58, s%d, 1' % S_WAVE)
e('s_cmp_ge_u32 s58, 4')
e('s_cbranch_scc1 L_nox')
e('s_lshl_b32 s44, s58, 11')
e('v_lshlrev_b32 v4, 4, v1')
e('v_add_u32 v4, s44, v4')
e('global_load_dwordx4 %s, v4, %s' % (vr(TMP), sr(S_X)))
e('global_load_dwordx4 %s, v4, %s offset:1024' % (vr(TMP + 4), sr(S_X)))
lab('L_nox')

e('s_lshr_b32 s44, s2, 5')
e('s_lshl_b32 s44, s44, 7')
e('s_and_b32 s45, s%d, 3' % S_WAVE)
e('s_lshl_b32 s45, s45, 5')
e('s_add_u32 s47, s44, s45')
e('s_lshl_b32 s46, s47, 13')
e('s_and_b32 s45, s2, 31')
e('s_lshl_b32 s45, s45, 8')
e('s_add_u32 s46, s46, s45')
add64(S_T1, S_WQ, 46)
e('s_lshr_b32 s44, s2, 1')
e('s_lshl_b32 s44, s44, 16')
e('s_and_b32 s45, s2, 1')
e('s_lshl_b32 s45, s45, 10')
e('s_add_u32 s44, s44, s45')
e('s_and_b32 s45, s%d, 3' % S_WAVE)
e('s_lshl_b32 s45, s45, 8')
e('s_add_u32 s44, s44, s45')
add64(S_WOB, S_WO, 44)
e('s_cmp_ge_u32 s2, 112')
e('s_cselect_b32 s48, 1, 0')
e('s_mul_i32 s44, s48, 112')
e('s_sub_u32 s44, s2, s44')
e('s_mul_i32 s45, s44, 2341')
e('s_lshr_b32 s49, s45, 16')
e('s_mul_i32 s45, s49, 28')
e('s_sub_u32 s50, s44, s45')
e('s_lshl_b32 s44, s49, 8')
e('s_lshl_b32 s45, s%d, 5' % S_WAVE)
e('s_add_u32 s51, s44, s45')
e('s_mul_i32 s44, s51, 7168')
e('s_lshl_b32 s45, s50, 8')
e('s_add_u32 s44, s44, s45')
e('s_cmp_eq_u32 s48, 0')
e('s_cselect_b32 s52, s%d, s%d' % (S_WG, S_WU))
e('s_cselect_b32 s53, s%d, s%d' % (S_WG + 1, S_WU + 1))
add64(S_T2, 52, 44)
e('s_lshl_b32 s44, s2, 17')
e('s_lshl_b32 s45, s%d, 14' % S_WAVE)
e('s_add_u32 s44, s44, s45')
add64(S_KB, S_K, 44)
add64(S_VB, S_V, 44)
e('s_lshr_b32 s44, s2, 2')
e('s_lshl_b32 s44, s44, 6')
e('s_lshr_b32 s45, s%d, 1' % S_WAVE)
e('s_and_b32 s45, s45, 1')
e('s_lshl_b32 s45, s45, 5')
e('s_add_u32 s44, s44, s45')
e('s_lshl_b32 s44, s44, 11')
e('s_and_b32 s45, s2, 3')
e('s_lshl_b32 s45, s45, 9')
e('s_add_u32 s44, s44, s45')
e('s_and_b32 s45, s%d, 1' % S_WAVE)
e('s_lshl_b32 s45, s45, 8')
e('s_add_u32 s44, s44, s45')
add64(S_WDB, S_WD, 44)

e('s_cmp_ge_u32 s58, 4')
e('s_cbranch_scc1 L_noln')
e('s_waitcnt vmcnt(0)')
X = TMP + 8
for i in range(8):
    e('v_lshlrev_b32 v%d, 16, v%d' % (X + 2 * i, TMP + i))
    e('v_and_b32 v%d, 0xffff0000, v%d' % (X + 2 * i + 1, TMP + i))
e('v_add_f32 v4, v%d, v%d' % (X, X + 1))
for i in range(2, 16):
    e('v_add_f32 v4, v4, v%d' % (X + i))
row_allreduce('add', 4)
xrow_allreduce('add', 4, 5)
e('v_mul_f32 v4, 0x3a800000, v4')
e('v_sub_f32 v5, v%d, v4' % X)
e('v_mul_f32 v6, v5, v5')
for i in range(1, 16):
    e('v_sub_f32 v5, v%d, v4' % (X + i))
    e('v_fmac_f32 v6, v5, v5')
row_allreduce('add', 6)
xrow_allreduce('add', 6, 5)
e('v_mul_f32 v6, 0x3a800000, v6')
bf16_round(4, 4)
bf16_round(6, 6)
e('v_add_f32 v6, %s, v6' % f32(1e-5))
bf16_round(6, 6)
e('v_sqrt_f32 v6, v6')
e('s_nop 0')
bf16_round(6, 6)
e('v_rcp_f32 v7, v6')
e('s_nop 0')
for i in range(16):
    e('v_sub_f32 v5, v%d, v4' % (X + i))
    bf16_round(5, 5)
    e('v_mul_f32 v8, v5, v7')
    e('v_fma_f32 v9, -v8, v6, v5')
    e('v_fma_f32 v%d, v9, v7, v8' % (X + i))
for i in range(8):
    e('v_cvt_pk_bf16_f32 v%d, v%d, v%d' % (TMP + i, X + 2 * i, X + 2 * i + 1))
e('s_lshl_b32 s44, s58, 11')
e('v_lshlrev_b32 v4, 4, v1')
e('v_add_u32 v4, s44, v4')
e('ds_write_b128 v4, %s offset:%d' % (vr(TMP), XN))
e('ds_write_b128 v4, %s offset:%d' % (vr(TMP + 4), XN + 1024))
lab('L_noln')

e('s_cmp_lt_u32 s%d, 4' % S_WAVE)
e('s_cselect_b64 exec, -1, 0')
load_block(T1, S_T1, 8192, 4)
e('s_cmp_lt_u32 s2, 224')
e('s_cselect_b64 exec, -1, 0')
load_block(T2, S_T2, 7168, 5)
e('s_cmp_ge_u32 s%d, 3' % S_WAVE)
e('s_cselect_b64 exec, -1, 0')
load_K(6, 0, NKE)
e('s_mov_b64 exec, -1')

e('s_cmp_lg_u32 s%d, 0' % S_WAVE)
e('s_cbranch_scc1 L_noclr')
e('v_mov_b32 v4, %d' % NONCE)
e('v_mov_b32 v6, 0')
e('v_mov_b32 v7, 0')
e('ds_write_b64 v4, v[6:7] offset:8')
e('ds_write_b64 v4, v[6:7] offset:16')
e('ds_write_b64 v4, v[6:7] offset:24')
lab('L_noclr')
stamp(1)
e('s_waitcnt lgkmcnt(0)')
e('s_barrier')
stamp(2)

e('v_and_b32 v4, 3, v3')
e('v_lshlrev_b32 v4, 11, v4')
e('v_lshl_add_u32 v4, v2, 4, v4')
e('s_lshl_b32 s44, s%d, 11' % S_WAVE)
e('v_lshlrev_b32 v6, 5, v3')
e('v_add_u32 v6, s44, v6')
e('s_cmp_ge_u32 s%d, 4' % S_WAVE)
e('s_cbranch_scc1 L_noq')
e('s_lshl_b32 s44, s47, 1')
e('v_add_u32 v5, s44, v4')
e('ds_read_b128 %s, v5 offset:%d' % (vr(AF), XN))
e('s_waitcnt vmcnt(%d) lgkmcnt(0)' % (8 + NKE))
gemv_block(T1, AF, VV, False)
e('v_add_u32 v7, %d, v6' % P1)
write_part(VV, False, 7, '0xffff', 256)
lab('L_noq')
e('s_cmp_ge_u32 s2, 224')
e('s_cbranch_scc1 L_nogu')
e('s_lshl_b32 s44, s51, 1')
e('v_add_u32 v5, s44, v4')
e('ds_read_b128 %s, v5 offset:%d' % (vr(AF), XN))
e('s_waitcnt vmcnt(%d) lgkmcnt(0)' % NKE)
gemv_block(T2, AF, VV + 32, False)
e('v_add_u32 v7, %d, v6' % P2)
write_part(VV + 32, False, 7, '0xffff', 256)
lab('L_nogu')

e('s_cmp_lg_u32 s%d, 0' % S_WAVE)
e('s_cbranch_scc1 L_nononce2')
e('s_mov_b32 s%d, 0' % S_SPIN)
e('v_mov_b32 v5, 0')
lab('L_noncepoll')
e('global_load_dword v4, v5, %s sc1' % sr(S_DBG))
e('s_waitcnt vmcnt(0)')
e('v_readfirstlane_b32 s44, v4')
e('s_cmp_lg_u32 s44, 0')
e('s_cbranch_scc1 L_noncegot')
e('s_add_u32 s%d, s%d, 1' % (S_SPIN, S_SPIN))
e('s_cmp_ge_u32 s%d, %d' % (S_SPIN, SPIN_MAX))
e('s_cbranch_scc1 L_noncegot')
e('s_sleep 1')
e('s_branch L_noncepoll')
lab('L_noncegot')
e('v_mov_b32 v5, %d' % NONCE)
e('ds_write_b32 v5, v4')
lab('L_nononce2')
stamp(3)
e('s_waitcnt lgkmcnt(0)')
e('s_barrier')
e('v_mov_b32 v5, %d' % NONCE)
e('ds_read_b32 v4, v5')
stamp(4)

e('v_mov_b32 v%d, 0xff' % VFF)
e('s_waitcnt lgkmcnt(0)')
e('v_readfirstlane_b32 s%d, v4' % S_TAG)
e('s_nop 3')
e('s_and_b32 s%d, s%d, 0xff' % (S_TG, S_TAG))
e('s_bfe_u32 s%d, s%d, 0x80008' % (S_TG + 1, S_TAG))
e('s_bfe_u32 s%d, s%d, 0x80010' % (S_TG + 2, S_TAG))
e('s_lshr_b32 s%d, s%d, 24' % (S_TG + 3, S_TAG))
e('s_cmp_lt_u32 s%d, 4' % S_WAVE)
e('s_cbranch_scc1 L_pubdone')
e('s_and_b32 s44, s%d, 1' % S_WAVE)
e('s_lshl_b32 s44, s44, 1')
e('v_lshrrev_b32 v6, 5, v1')
e('v_add_u32 v6, s44, v6')
e('v_and_b32 v7, 31, v1')
e('v_lshlrev_b32 v7, 4, v7')
e('s_cmp_lt_u32 s%d, 6' % S_WAVE)
e('s_cbranch_scc0 L_pubgu')
e('s_lshr_b32 s46, s2, 5')
e('s_lshl_b32 s46, s46, 16')
e('s_and_b32 s54, s2, 31')
e('s_lshl_b32 s54, s54, 9')
e('s_add_u32 s46, s46, s54')
e('s_add_u32 s46, s46, %d' % QP)
e('v_lshl_add_u32 v4, v6, 9, v7')
for v in range(4):
    e('ds_read_b128 %s, v4 offset:%d' % (vr(TMP + 4 * v), P1 + v * 2048))
e('v_lshlrev_b32 v5, 14, v6')
e('v_add3_u32 v5, v5, v7, s46')
e('s_waitcnt lgkmcnt(0)')
for k in range(4):
    e('v_add_f32 v%d, v%d, v%d' % (8 + k, TMP + k, TMP + 4 + k))
for v in range(2, 4):
    for k in range(4):
        e('v_add_f32 v%d, v%d, v%d' % (8 + k, 8 + k, TMP + 4 * v + k))
e('s_branch L_pubgo')
lab('L_pubgu')
e('s_cmp_ge_u32 s2, 224')
e('s_cbranch_scc1 L_pubdone')
e('s_lshl_b32 s46, s48, 2')
e('s_add_u32 s46, s46, s49')
e('s_mul_i32 s46, s46, %d' % (4 * 14336))
e('s_lshl_b32 s54, s50, 9')
e('s_add_u32 s46, s46, s54')
e('s_add_u32 s46, s46, %d' % GP)
e('v_lshl_add_u32 v4, v6, 9, v7')
for v in range(8):
    e('ds_read_b128 %s, v4 offset:%d' % (vr(TMP + 4 * v), P2 + v * 2048))
e('v_mul_u32_u24 v5, 14336, v6')
e('v_add3_u32 v5, v5, v7, s46')
e('s_waitcnt lgkmcnt(0)')
for k in range(4):
    e('v_add_f32 v%d, v%d, v%d' % (8 + k, TMP + k, TMP + 4 + k))
for v in range(2, 8):
    for k in range(4):
        e('v_add_f32 v%d, v%d, v%d' % (8 + k, 8 + k, TMP + 4 * v + k))
lab('L_pubgo')
addtag([8, 9, 10, 11])
e('global_store_dwordx4 v5, v[8:11], %s sc1' % sr(S_WS))
lab('L_pubdone')

e('s_cmp_ge_u32 s%d, 3' % S_WAVE)
e('s_cbranch_scc1 L_bulk')
THR[0] = OPT['thrg']
load_K(6, 0, 16)
THR[0] = 0
e('s_cmp_lg_u32 s%d, 2' % S_WAVE)
e('s_cbranch_scc1 L_notl1')
e('s_lshl_b32 s44, s2, 8')
e('s_add_u32 s44, s44, %d' % QP)
e('v_lshlrev_b32 v4, 16, v2')
e('v_lshl_add_u32 v4, v3, 4, v4')
e('v_add_u32 v4, s44, v4')
e('v_add_u32 v5, 0x40000, v4')
def _q1():
    e('global_load_dwordx4 %s, v4, %s sc1' % (vr(T1), sr(S_WS)))
    e('global_load_dwordx4 %s, v5, %s sc1' % (vr(T1 + 4), sr(S_WS)))
spin_loop(_q1, [T1, T1 + 4], 8, 10, sleep=4)
untag([T1, T1 + 4])
for k in range(4):
    e('v_add_f32 v%d, v%d, v%d' % (8 + k, T1 + k, T1 + 4 + k))
xrow_batch('add', [8, 9, 10, 11], [TMP + k for k in range(4)])
for k in range(4):
    bf16_round(8 + k, 8 + k)
addtag([8, 9, 10, 11])
e('s_lshl_b32 s44, s2, 8')
e('s_add_u32 s44, s44, %d' % Q2)
e('v_lshlrev_b32 v4, 4, v3')
e('v_add_u32 v4, s44, v4')
e('s_mov_b64 exec, 0xffff')
e('global_store_dwordx4 v4, v[8:11], %s sc1' % sr(S_WS))
e('s_mov_b64 exec, -1')
stamp(5)
e('s_branch L_vld')
lab('L_notl1')
THR[0] = OPT['thrg']
load_V(6)
csync_inc()
THR[0] = 0
e('s_cmp_eq_u32 s%d, 1' % S_WAVE)
e('s_cbranch_scc1 L_hgather')
e('s_lshr_b32 s44, s2, 4')
e('s_lshl_b32 s44, s44, 12')
e('s_add_u32 s44, s44, %d' % Q2)
e('v_lshlrev_b32 v4, 4, v1')
e('v_add_u32 v4, s44, v4')
def _q():
    for i in range(4):
        e('global_load_dwordx4 %s, v4, %s offset:%d sc1' % (vr(T1 + 4 * i), sr(S_WS), i * 1024))
spin_loop(_q, [T1 + 4 * i for i in range(4)], 8, 10, sleep=2)
e('v_lshrrev_b32 v5, 5, v1')
e('v_mul_u32_u24 v5, %d, v5' % QLS)
e('v_and_b32 v6, 31, v1')
e('v_lshl_add_u32 v5, v6, 3, v5')
for i in range(4):
    e('v_perm_b32 v6, v%d, v%d, s%d' % (T1 + 4 * i + 1, T1 + 4 * i, S_SEL1))
    e('v_perm_b32 v7, v%d, v%d, s%d' % (T1 + 4 * i + 3, T1 + 4 * i + 2, S_SEL1))
    e('ds_write_b64 v5, v[6:7] offset:%d' % (QL + 2 * QLS * i))
lds_flag_set(NONCE + 8)
stamp(5)
e('s_branch L_late_ld')

lab('L_hgather')
e('s_cmp_ge_u32 s2, 224')
e('s_cbranch_scc1 %s' % ('L_vld' if OPT['gq'] else 'L_late_ld'))
e('s_lshr_b32 s44, s2, 2')
e('s_lshl_b32 s44, s44, 8')
e('s_add_u32 s44, s44, %d' % GP)
e('v_mul_u32_u24 v4, 14336, v2')
e('v_lshl_add_u32 v4, v3, 4, v4')
e('v_add_u32 v4, s44, v4')
def _h():
    for i in range(8):
        e('v_add_u32 v5, %d, v4' % ((((i & 1) * 4 + (i >> 1)) * 4) * 14336))
        e('global_load_dwordx4 %s, v5, %s sc1' % (vr(T1 + 4 * i), sr(S_WS)))
if not OPT['skiph']:
    spin_loop(_h, [T1 + 4 * i for i in range(8)], 8, 10, sleep=4)
untag([T1 + 4 * i for i in range(8)])
for m in range(2):
    for k in range(4):
        d = TMP + 4 * m + k
        e('v_add_f32 v%d, v%d, v%d' % (d, T1 + 4 * m + k, T1 + 8 + 4 * m + k))
        e('v_add_f32 v%d, v%d, v%d' % (d, d, T1 + 16 + 4 * m + k))
        e('v_add_f32 v%d, v%d, v%d' % (d, d, T1 + 24 + 4 * m + k))
        bf16_round(d, d)
for k in range(4):
    g_ = TMP + k; u_ = TMP + 4 + k
    e('v_mul_f32 v4, v%d, v%d' % (g_, g_))
    e('v_mul_f32 v4, v4, v%d' % g_)
    e('v_mov_b32 v5, %s' % f32(0.044715))
    e('v_fma_f32 v4, v4, v5, v%d' % g_)
    e('v_mul_f32 v4, %s, v4' % f32(-2.0 * 0.7978845608028654 * 1.4426950408889634))
    sigmoid_mul(6, g_, 4, 5)
    bf16_round(6, 6)
    e('v_mul_f32 v%d, v6, v%d' % (g_, u_))
e('v_lshlrev_b32 v5, 3, v1')
e('v_cvt_pk_bf16_f32 v6, v%d, v%d' % (TMP, TMP + 1))
e('v_cvt_pk_bf16_f32 v7, v%d, v%d' % (TMP + 2, TMP + 3))
e('ds_write_b64 v5, v[6:7] offset:%d' % HL)
lds_flag_set(NONCE + 12)
stamp(5)
e('s_branch %s' % ('L_vld' if OPT['gq'] else 'L_late_ld'))

lab('L_bulk')
THR[0] = OPT['thr']
load_K(6, NKE, 16)
lab('L_vld')
THR[0] = OPT['thrv']
load_V(6)
csync_inc()
lab('L_late_ld')
if OPT['late'] == 2:
    THR[0] = 0
if OPT['late'] in (0, 2):
    late_loads()
THR[0] = 0
stamp(6)
NKR = 16 - NKE

lds_flag_wait(NONCE + 8)
stamp(7)
QF = TMP
SV = TMP + 16
e('v_and_b32 v4, 7, v3')
e('v_mul_u32_u24 v4, %d, v4' % QLS)
e('v_lshl_add_u32 v4, v2, 4, v4')
for t in range(4):
    e('ds_read_b128 %s, v4 offset:%d' % (vr(QF + 4 * t), QL + 64 * t))
LX = 16 if OPT['late'] in (0, 2) else 0
e('s_waitcnt vmcnt(%d) lgkmcnt(0)' % (16 + LX))
stamp(8)
for T in range(4):
    for t in range(4):
        e('v_mfma_f32_16x16x32_bf16 %s, %s, %s, %s' % (vr(SV + 4 * T), ar(16 * T + 4 * t), vr(QF + 4 * t), '0' if t == 0 else vr(SV + 4 * T)))
e('s_nop 7')
e('s_mov_b32 s44, %s' % f32(128 ** -0.5))
for i in range(0, 16, 2):
    e('v_cvt_pk_bf16_f32 v4, v%d, v%d' % (SV + i, SV + i + 1))
    e('v_lshlrev_b32 v5, 16, v4')
    e('v_and_b32 v6, 0xffff0000, v4')
    e('v_mul_f32 v5, s44, v5')
    e('v_mul_f32 v6, s44, v6')
    e('v_cvt_pk_bf16_f32 v4, v5, v6')
    e('v_lshlrev_b32 v%d, 16, v4' % (SV + i))
    e('v_and_b32 v%d, 0xffff0000, v4' % (SV + i + 1))
e('v_max3_f32 v8, v%d, v%d, v%d' % (SV, SV + 1, SV + 2))
for i in range(3, 15, 2):
    e('v_max3_f32 v8, v8, v%d, v%d' % (SV + i, SV + i + 1))
e('v_max_f32 v8, v8, v%d' % (SV + 15))
xrow_allreduce('max', 8, 5)
e('s_mov_b32 s44, 0x%x' % LOG2E)
e('v_mul_f32 v5, s44, v8')
for i in range(16):
    e('v_fma_f32 v%d, v%d, s44, -v5' % (SV + i, SV + i))
    e('v_exp_f32 v%d, v%d' % (SV + i, SV + i))
e('s_nop 0')
e('v_add_f32 v9, v%d, v%d' % (SV, SV + 1))
for i in range(2, 16):
    e('v_add_f32 v9, v9, v%d' % (SV + i))
xrow_allreduce('add', 9, 5)
for i in range(8):
    e('v_cvt_pk_bf16_f32 v%d, v%d, v%d' % (PREG + i, SV + 2 * i, SV + 2 * i + 1))
e('s_waitcnt vmcnt(%d)' % (8 + LX))
gemv_block(VV, PREG, 0, True, first=True)
e('s_waitcnt vmcnt(%d)' % LX)
gemv_block(VV + 32, PREG + 4, 0, True, first=False)
if OPT['late'] == 3:
    late_loads()
e('s_lshl_b32 s44, s%d, 6' % S_WAVE)
e('v_lshlrev_b32 v4, 3, v1')
e('v_add_u32 v4, s44, v4')
e('s_mov_b64 exec, 0xff')
e('ds_write_b64 v4, v[8:9] offset:%d' % MLL)
e('s_mov_b64 exec, -1')
e('s_lshl_b32 s44, s%d, 12' % S_WAVE)
e('s_add_u32 s44, s44, %d' % OV)
e('v_lshlrev_b32 v7, 5, v3')
e('v_lshl_add_u32 v7, v2, 11, v7')
e('v_add_u32 v7, s44, v7')
write_part(0, True, 7, '0xffffffff', 512)
e('s_waitcnt lgkmcnt(0)')
e('s_barrier')
stamp(10)

e('s_lshl_b32 s44, s%d, 3' % S_WAVE)
e('v_mov_b32 v4, s44')
for v in range(8):
    e('ds_read_b64 %s, v4 offset:%d' % (vr(TMP + 2 * v, 2), MLL + 64 * v))
e('s_lshl_b32 s44, s%d, 9' % S_WAVE)
e('s_add_u32 s44, s44, %d' % OV)
e('v_and_b32 v6, 31, v1')
e('v_lshlrev_b32 v6, 4, v6')
e('v_add_u32 v5, s44, v6')
for v in range(8):
    e('ds_read_b128 %s, v5 offset:%d' % (vr(VV + 4 * v), 4096 * v))
e('s_bfe_u32 s44, s2, 0x20004')
e('s_lshl_b32 s44, s44, 3')
e('s_add_u32 s44, s44, s%d' % S_WAVE)
e('s_lshr_b32 s45, s2, 6')
e('s_and_b32 s46, s2, 15')
e('s_lshl_b32 s54, s44, 15')
e('s_lshl_b32 s55, s45, 12')
e('s_add_u32 s54, s54, s55')
e('s_lshl_b32 s55, s46, 8')
e('s_add_u32 s54, s54, s55')
e('s_add_u32 s54, s54, %d' % OP)
e('v_bfe_u32 v7, v1, 4, 1')
e('v_lshlrev_b32 v7, 14, v7')
e('v_lshl_add_u32 v7, v3, 4, v7')
e('v_add_u32 v%d, s54, v7' % (TMP + 16))
e('s_lshl_b32 s44, s44, 2')
e('s_add_u32 s44, s44, s45')
e('s_lshl_b32 s44, s44, 8')
e('s_lshl_b32 s46, s46, 4')
e('s_add_u32 s44, s44, s46')
e('s_add_u32 s44, s44, %d' % ML)
e('v_mov_b32 v%d, s44' % (TMP + 17))
e('s_waitcnt lgkmcnt(0)')
e('v_max3_f32 v8, v%d, v%d, v%d' % (TMP, TMP + 2, TMP + 4))
e('v_max3_f32 v8, v8, v%d, v%d' % (TMP + 6, TMP + 8))
e('v_max3_f32 v8, v8, v%d, v%d' % (TMP + 10, TMP + 12))
e('v_max_f32 v8, v8, v%d' % (TMP + 14))
e('s_mov_b32 s46, 0x%x' % LOG2E)
for v in range(8):
    e('v_sub_f32 v%d, v%d, v8' % (TMP + 2 * v, TMP + 2 * v))
    e('v_mul_f32 v%d, s46, v%d' % (TMP + 2 * v, TMP + 2 * v))
    e('v_exp_f32 v%d, v%d' % (TMP + 2 * v, TMP + 2 * v))
e('s_nop 0')
for k in range(4):
    e('v_mul_f32 v%d, v%d, v%d' % (4 + k, TMP, VV + k))
e('v_mul_f32 v9, v%d, v%d' % (TMP, TMP + 1))
for v in range(1, 8):
    for k in range(4):
        e('v_fmac_f32 v%d, v%d, v%d' % (4 + k, TMP + 2 * v, VV + 4 * v + k))
    e('v_fmac_f32 v9, v%d, v%d' % (TMP + 2 * v, TMP + 2 * v + 1))
e('v_mov_b32 v10, v8')
e('v_mov_b32 v11, v9')
addtag([4, 5, 6, 7])
addtag([8, 9, 10, 11])
e('s_mov_b32 exec_hi, 0')
e('global_store_dwordx4 v%d, v[4:7], %s sc1' % (TMP + 16, sr(S_WS)))
e('s_mov_b64 exec, 1')
e('global_store_dwordx4 v%d, v[8:11], %s sc1' % (TMP + 17, sr(S_WS)))
e('s_mov_b64 exec, -1')
stamp(11)
if OPT['late'] == 1:
    late_loads()
e('s_cmp_eq_u32 s57, 0')
e('s_cbranch_scc1 L_nodown')
lds_flag_wait(NONCE + 12)
e('s_lshr_b32 s44, s%d, 1' % S_WAVE)
e('s_and_b32 s44, s44, 1')
e('s_lshl_b32 s44, s44, 6')
e('v_and_b32 v4, 3, v3')
e('v_lshlrev_b32 v4, 7, v4')
e('v_lshl_add_u32 v4, v2, 4, v4')
e('v_add_u32 v4, s44, v4')
e('ds_read_b128 %s, v4 offset:%d' % (vr(AF), HL))
e('s_waitcnt vmcnt(%d) lgkmcnt(0)' % (0 if OPT['late'] == 1 else 2))
gemv_block(T2, AF, T2, False)
e('s_sub_u32 s44, s%d, 4' % S_WAVE)
e('s_lshl_b32 s44, s44, 11')
e('s_add_u32 s44, s44, %d' % P3)
e('v_lshlrev_b32 v7, 5, v3')
e('v_add_u32 v7, s44, v7')
write_part(T2, False, 7, '0xffff', 256)
lab('L_nodown')

e('s_cmp_ge_u32 s%d, 4' % S_WAVE)
e('s_cbranch_scc1 L_nowog')
e('s_lshr_b32 s45, s2, 3')
e('s_lshl_b32 s44, s45, 15')
e('s_bfe_u32 s46, s2, 0x10002')
e('s_lshl_b32 s46, s46, 14')
e('s_add_u32 s44, s44, s46')
e('s_lshl_b32 s46, s%d, 12' % S_WAVE)
e('s_add_u32 s44, s44, s46')
e('s_bfe_u32 s46, s2, 0x10001')
e('s_lshl_b32 s46, s46, 7')
e('s_add_u32 s44, s44, s46')
e('s_add_u32 s44, s44, %d' % OP)
e('v_lshrrev_b32 v6, 3, v1')
e('v_and_b32 v7, 7, v1')
e('v_lshlrev_b32 v4, 8, v6')
e('v_lshl_add_u32 v4, v7, 4, v4')
e('v_add_u32 v4, s44, v4')
e('s_lshl_b32 s44, s45, 2')
e('s_add_u32 s44, s44, s%d' % S_WAVE)
e('s_lshl_b32 s44, s44, 8')
e('s_add_u32 s44, s44, %d' % ML)
e('v_lshlrev_b32 v5, 4, v6')
e('v_add_u32 v5, s44, v5')
e('s_waitcnt vmcnt(0)')
transpose_block(T1)
spin_each([lambda: e('global_load_dwordx4 %s, v5, %s sc1' % (vr(VV + 8), sr(S_WS))),
           lambda: e('global_load_dwordx4 %s, v5, %s offset:128 sc1' % (vr(VV + 12), sr(S_WS))),
           lambda: e('global_load_dwordx4 %s, v4, %s sc1' % (vr(VV), sr(S_WS))),
           lambda: e('global_load_dwordx4 %s, v4, %s offset:2048 sc1' % (vr(VV + 4), sr(S_WS)))],
          [VV + 8, VV + 12, VV, VV + 4], 8, 10, sleep=OPT['slp'])
stamp(12)
CT = VV + 16
untag([VV, VV + 4, VV + 8, VV + 12])
def red3(op, v, t):
    e('s_nop 1')
    e('v_%s_f32_dpp v%d, v%d, v%d row_ror:8 row_mask:0xf bank_mask:0xf' % (op, v, v, v))
    xrow_allreduce(op, v, t)
e('v_max_f32 v8, v%d, v%d' % (VV + 8, VV + 12))
red3('max', 8, 5)
e('s_mov_b32 s44, 0x%x' % LOG2E)
e('v_sub_f32 v9, v%d, v8' % (VV + 8))
e('v_sub_f32 v10, v%d, v8' % (VV + 12))
e('v_mul_f32 v9, s44, v9')
e('v_mul_f32 v10, s44, v10')
e('v_exp_f32 v9, v9')
e('v_exp_f32 v10, v10')
e('s_nop 0')
e('v_mul_f32 v8, v9, v%d' % (VV + 9))
e('v_fmac_f32 v8, v10, v%d' % (VV + 13))
for k in range(4):
    e('v_mul_f32 v%d, v9, v%d' % (CT + k, VV + k))
    e('v_fmac_f32 v%d, v10, v%d' % (CT + k, VV + 4 + k))
R5 = [8, CT, CT + 1, CT + 2, CT + 3]
e('s_nop 1')
for rg in R5:
    e('v_add_f32_dpp v%d, v%d, v%d row_ror:8 row_mask:0xf bank_mask:0xf' % (rg, rg, rg))
xrow_batch('add', R5, [CT + 8 + k for k in range(5)])
e('v_rcp_f32 v10, v8')
e('s_nop 0')
e('v_fma_f32 v11, -v8, v10, 1.0')
e('v_fma_f32 v10, v11, v10, v10')
for k in range(4):
    e('v_mul_f32 v%d, v10, v%d' % (CT + k, CT + k))
e('v_cvt_pk_bf16_f32 v8, v%d, v%d' % (CT, CT + 1))
e('v_cvt_pk_bf16_f32 v9, v%d, v%d' % (CT + 2, CT + 3))
e('s_lshl_b32 s44, s%d, 6' % S_WAVE)
e('v_lshlrev_b32 v4, 3, v7')
e('v_add_u32 v4, s44, v4')
e('s_mov_b64 exec, 0xff')
e('ds_write_b64 v4, v[8:9] offset:%d' % OL)
e('s_mov_b64 exec, -1')
e('v_and_b32 v4, 3, v3')
e('v_lshlrev_b32 v4, 6, v4')
e('v_lshl_add_u32 v4, v2, 4, v4')
e('s_lshl_b32 s44, s%d, 11' % S_WAVE)
e('s_add_u32 s44, s44, %d' % P4)
e('v_lshlrev_b32 v7, 5, v3')
e('v_add_u32 v7, s44, v7')
e('v_lshrrev_b32 v6, 5, v1')
e('v_lshlrev_b32 v6, 9, v6')
e('v_and_b32 v5, 31, v1')
e('v_lshl_add_u32 v6, v5, 4, v6')
e('v_add_u32 v6, s44, v6')
e('s_and_b32 s44, s2, 1')
e('s_lshl_b32 s44, s44, 18')
e('s_lshl_b32 s45, s%d, 16' % S_WAVE)
e('s_add_u32 s44, s44, s45')
e('s_lshr_b32 s45, s2, 1')
e('s_lshl_b32 s45, s45, 6')
e('s_add_u32 s44, s44, s45')
e('s_add_u32 s44, s44, %d' % SP)
e('v_lshrrev_b32 v16, 2, v5')
e('v_lshlrev_b32 v16, 13, v16')
e('v_lshrrev_b32 v17, 5, v1')
e('v_lshl_add_u32 v16, v17, 19, v16')
e('v_and_b32 v17, 3, v1')
e('v_lshl_add_u32 v16, v17, 4, v16')
e('v_add_u32 v16, s44, v16')
e('v_add_u32 v17, 0x100000, v16')
lab('L_nowog')
e('s_waitcnt lgkmcnt(0)')
e('s_barrier')
stamp(13)
e('s_cmp_ge_u32 s%d, 4' % S_WAVE)
e('s_cbranch_scc1 L_dpub')
e('ds_read_b128 %s, v4 offset:%d' % (vr(AF), OL))
e('s_waitcnt lgkmcnt(0)')
for c in range(8):
    e('v_mfma_f32_16x16x32_bf16 %s, %s, %s, 0' % (ar(4 * c), vr(AF), vr(TMP + 4 * c)))
write_part(0, True, 7, '0xffff')
e('s_waitcnt lgkmcnt(0)')
e('ds_read_b128 v[8:11], v6')
e('ds_read_b128 v[12:15], v6 offset:1024')
e('s_waitcnt lgkmcnt(0)')
addtag([8, 9, 10, 11])
addtag([12, 13, 14, 15])
e('global_store_dwordx4 v16, v[8:11], %s sc1' % sr(S_WS))
e('global_store_dwordx4 v17, v[12:15], %s sc1' % sr(S_WS))
stamp(14)
e('s_branch L_final')
lab('L_dpub')
e('s_cmp_ge_u32 s2, 224')
e('s_cbranch_scc1 L_nodpubA')
e('s_sub_u32 s58, s%d, 4' % S_WAVE)
e('s_lshl_b32 s46, s58, 9')
e('v_lshrrev_b32 v6, 5, v1')
e('v_lshlrev_b32 v6, 11, v6')
e('v_and_b32 v7, 31, v1')
e('v_lshl_add_u32 v6, v7, 4, v6')
e('v_add_u32 v6, s46, v6')
e('ds_read_b128 v[12:15], v6 offset:%d' % P3)
e('ds_read_b128 v[16:19], v6 offset:%d' % (P3 + 4096))
e('s_lshl_b32 s44, s58, 18')
e('s_and_b32 s45, s2, 3')
e('s_lshl_b32 s45, s45, 16')
e('s_add_u32 s44, s44, s45')
e('s_lshr_b32 s45, s2, 2')
e('s_lshl_b32 s45, s45, 6')
e('s_add_u32 s44, s44, s45')
e('s_add_u32 s44, s44, %d' % DP)
e('v_lshrrev_b32 v7, 2, v1')
e('v_lshlrev_b32 v7, 12, v7')
e('v_and_b32 v5, 3, v1')
e('v_lshl_add_u32 v7, v5, 4, v7')
e('v_add_u32 v7, s44, v7')
e('s_waitcnt lgkmcnt(0)')
for k in range(4):
    e('v_add_f32 v%d, v%d, v%d' % (12 + k, 12 + k, 16 + k))
addtag([12, 13, 14, 15])
e('global_store_dwordx4 v7, v[12:15], %s sc1' % sr(S_WS))
lab('L_nodpubA')
stamp(14)

lab('L_final')
e('s_cmp_lg_u32 s%d, 0' % S_WAVE)
e('s_cbranch_scc1 L_fin2')
e('s_lshl_b32 s44, s2, 12')
e('v_lshlrev_b32 v4, 4, v1')
e('v_add_u32 v4, s44, v4')
e('v_add_u32 v18, s44, v4')
e('v_and_b32 v5, 3, v1')
e('v_lshlrev_b32 v5, 4, v5')
e('s_lshl_b32 s45, s2, 5')
e('v_lshrrev_b32 v6, 1, v5')
e('v_add_u32 v6, s45, v6')
e('global_load_dwordx2 v[16:17], v6, %s' % sr(S_X))
for k in range(4):
    e('v_mov_b32 v%d, s%d' % (VV + 44 + k, S_TG + k))
e('v_add_u32 v4, %d, v4' % DP)
e('v_add_u32 v18, %d, v18' % (SP + 4096))
def mkf(i):
    def f():
        if i < 4:
            if i == 3:
                e('s_mov_b32 exec_hi, 0')
            e('global_load_dwordx4 %s, v4, %s offset:%d sc1' % (vr(VV + 32 + 4 * i), sr(S_WS), i * 1024))
            if i == 3:
                e('s_mov_b64 exec, -1')
        else:
            e('global_load_dwordx4 %s, v18, %s offset:%d sc1' % (vr(VV + 4 * (i - 4)), sr(S_WS), (i - 4) * 1024 - 4096))
    return f
if OPT['fpp']:
    spin_loop(mkf(11), [VV + 28], 8, 10, sleep=OPT['fslp'])
spin_each([mkf(i) for i in range(12)], [VV + 4 * i for i in range(12)], 8, 10, sleep=OPT['fslp'])
stamp(9)
untag([VV + 4 * i for i in range(12)])
for k in range(4):
    e('v_add_f32 v%d, v%d, v%d' % (8 + k, VV + k, VV + 4 + k))
    e('v_add_f32 v%d, v%d, v%d' % (12 + k, VV + 32 + k, VV + 36 + k))
for i in range(2, 8):
    for k in range(4):
        e('v_add_f32 v%d, v%d, v%d' % (8 + k, 8 + k, VV + 4 * i + k))
        if i < 4:
            e('v_add_f32 v%d, v%d, v%d' % (12 + k, 12 + k, VV + 32 + 4 * i + k))
for sh in (8, 4):
    e('s_nop 1')
    for rg in range(8, 16):
        e('v_add_f32_dpp v%d, v%d, v%d row_ror:%d row_mask:0xf bank_mask:0xf' % (rg, rg, rg, sh))
xrow_batch('add', list(range(8, 16)), [TMP + 8 + k for k in range(8)])
e('s_mov_b32 s44, 0x%x' % (LOG2E | 0x80000000))
e('v_lshlrev_b32 v%d, 16, v16' % TMP)
e('v_and_b32 v%d, 0xffff0000, v16' % (TMP + 1))
e('v_lshlrev_b32 v%d, 16, v17' % (TMP + 2))
e('v_and_b32 v%d, 0xffff0000, v17' % (TMP + 3))
for k in range(8):
    bf16_round(8 + k, 8 + k)
A_ = TMP + 8
for k in range(4):
    e('v_mul_f32 v%d, s44, v%d' % (A_ + k, 12 + k))
for k in range(4):
    e('v_exp_f32 v%d, v%d' % (A_ + k, A_ + k))
for k in range(4):
    e('v_add_f32 v%d, 1.0, v%d' % (A_ + k, A_ + k))
for k in range(4):
    e('v_rcp_f32 v%d, v%d' % (A_ + k, A_ + k))
for k in range(4):
    e('v_mul_f32 v%d, v%d, v%d' % (A_ + k, 12 + k, A_ + k))
for k in range(4):
    bf16_round(A_ + k, A_ + k)
for k in range(4):
    e('v_mul_f32 v%d, v%d, v%d' % (A_ + k, 8 + k, A_ + k))
for k in range(4):
    bf16_round(A_ + k, A_ + k)
for k in range(4):
    e('v_add_f32 v%d, v%d, v%d' % (TMP + k, TMP + k, A_ + k))
e('v_cvt_pk_bf16_f32 v12, v%d, v%d' % (TMP, TMP + 1))
e('v_cvt_pk_bf16_f32 v13, v%d, v%d' % (TMP + 2, TMP + 3))
e('s_mov_b64 exec, 0xf')
e('global_store_dwordx2 v6, v[12:13], %s' % sr(S_OUT))
lab('L_fin2')
if OPT['dbg']:
    e('s_cmp_lg_u32 s%d, 0' % S_WAVE)
    e('s_cbranch_scc1 L_end')
    stamp(15)
    e('s_mov_b64 exec, 1')
    e('s_waitcnt lgkmcnt(0)')
    e('v_mov_b32 v5, 0')
    for i in (0, 4, 5, 10, 12, 14, 15):
        e('s_sub_u32 s44, s%d, s%d' % (64 + 2 * i, S_TAG))
        e('s_cmp_gt_u32 s44, 100000')
        e('s_cselect_b32 s44, 0, s44')
        e('v_mov_b32 v4, s44')
        e('global_atomic_umax v5, v4, %s offset:%d' % (sr(S_DBG), 4 * (1 + i) if i < 15 else 60))
if OPT['stamps']:
    stamp(15)
    e('s_mov_b64 exec, 1')
    e('s_waitcnt lgkmcnt(0)')
    e('s_lshl_b32 s44, s2, 3')
    e('s_add_u32 s44, s44, s%d' % S_WAVE)
    e('s_lshl_b32 s44, s44, 6')
    e('s_add_u32 s44, s44, %d' % STAMPS)
    e('v_mov_b32 v5, s44')
    for i in range(16):
        e('v_mov_b32 v4, s%d' % (64 + 2 * i))
        e('global_store_dword v5, v4, %s offset:%d' % (sr(S_WS), 4 * i))
lab('L_end')
e('s_endpgm')

if OPT['pref']:
    import subprocess, re
    body = '\n'.join(x for x in L if 'PREFETCH_PLACEHOLDER' not in x)
    open('_sz.s', 'w').write('.amdgcn_target "amdgcn-amd-amdhsa--gfx950"\n.text\n' + body + '\n')
    subprocess.check_call(['clang', '-x', 'assembler', '-target', 'amdgcn-amd-amdhsa', '-mcpu=gfx950', '-c', '_sz.s', '-o', '_sz.o'])
    out = subprocess.check_output(['llvm-readelf', '-S', '_sz.o']).decode()
    tsz = int(re.search(r'\.text\s+PROGBITS\s+\S+\s+\S+\s+(\S+)', out).group(1), 16)
    nkb = (tsz - 128) // 1024
    print('code bytes', tsz, 'prefetch KB', nkb)
    pl = []
    for i in range(nkb):
        pl.append('    global_load_dwordx4 v[%d:%d], v4, s[44:45]' % (TMP + 28, TMP + 31))
        pl.append('    v_add_u32 v4, 1024, v4')
    idx = L.index('    PREFETCH_PLACEHOLDER')
    L[idx:idx + 1] = pl

hdr = open('cdna_kernels/%s.s.ref' % NAME).read().split('; Override')[0]
src = hdr
src += '; @launch grid=(256,1,1) block=(512,1,1) lds=%d\n' % LDS_BYTES
src += '.amdgcn_target "amdgcn-amd-amdhsa--gfx950"\n.text\n'
src += '.globl %s_kernel\n.p2align 8\n.type %s_kernel,@function\n%s_kernel:\n' % (NAME, NAME, NAME)
src += '\n'.join(L) + '\n'
src += '''.section .rodata,"a"
.p2align 6
.amdhsa_kernel %s_kernel
  .amdhsa_next_free_vgpr 252
  .amdhsa_next_free_sgpr 102
  .amdhsa_accum_offset %d
  .amdhsa_group_segment_fixed_size 0
  .amdhsa_kernarg_size 96
  .amdhsa_user_sgpr_count 2
  .amdhsa_user_sgpr_kernarg_segment_ptr 1
  .amdhsa_system_sgpr_workgroup_id_x 1
.end_amdhsa_kernel
''' % (NAME, NV)
open(OUT, 'w').write(src)
print('wrote', OUT, len(L), 'lines')
```

```python
import sys, struct
def f32(x):
    return '0x%08x' % struct.unpack('<I', struct.pack('<f', x))[0]

NAME = 'recurrent_scan__gqa_block_cached__glu_gated_geglu__decode'
OUT = 'cdna_kernels/%s.s' % NAME

OPT = dict(nt=1, stamps=0, nke=4, pref=1, thr=8, thrg=8, late=3, gq=0, csync=1, dbg=0, fpp=1, nohand=0, nost=0, nold=0, once=0, skipq=0, skiph=0, qn=4, slp=1, each=0, thrv=8, fslp=1, wpp=0)
for a in sys.argv[1:]:
    if '=' in a:
        k, v = a.split('=')
        if k == 'out':
            OUT = v
        else:
            OPT[k] = int(v)

L = []
def e(s):
    if (OPT['nohand'] or OPT['nost']) and s.startswith('global_store_dwordx4') and 'sc1' in s:
        return
    L.append('    ' + s)
def lab(s):
    L.append(s + ':')
def cmt(s):
    L.append('    ; ' + s)
_uid = [0]
def uid(p):
    _uid[0] += 1
    return '%s_%d' % (p, _uid[0])

QP = 0x000000
GP = 0x080000
OP = 0x200000
ML = 0x400000
SP = 0x500000
DP = 0x700000
Q2 = 0x180000
STAMPS = 0x1000000

XN = 0
NONCE = 8192
QL = 8448
QLS = 272
HL = 10752
OL = 11264
MLL = 11776
P1 = 12288
P2 = 28672
P3 = 45056
P4 = 53248
OV = 69632
LDS_BYTES = 102400

T1 = 24
T2 = 56
VV = 88
TMP = 152
NV = 188
PREG = 12
AF = 20
S_X, S_K, S_V, S_WQ, S_WO, S_WG, S_WU, S_WD, S_OUT, S_DBG, S_WS = 4, 6, 8, 10, 12, 16, 18, 20, 22, 24, 26
S_WAVE, S_TAG, S_SEL0, S_SEL1 = 28, 29, 30, 31
S_T1, S_T2, S_KB, S_VB, S_WDB = 32, 34, 36, 38, 40
S_WOB = 42
S_SPIN = 62
S_TG = 96
VFF = 184
LOG2E = 0x3fb8aa3b
SPIN_MAX = 200000
NKE = OPT['nke']

NT = ' nt' if OPT['nt'] else ''

def stamp(i):
    if OPT['stamps'] or OPT['dbg']:
        e('s_memrealtime s[%d:%d]' % (64 + 2 * i, 65 + 2 * i))

def vr(b, n=4):
    return 'v[%d:%d]' % (b, b + n - 1)
def ar(b, n=4):
    return 'a[%d:%d]' % (b, b + n - 1)
def sr(b, n=2):
    return 's[%d:%d]' % (b, b + n - 1)

def add64(dst, base, off_sreg):
    e('s_add_u32 s%d, s%d, s%d' % (dst, base, off_sreg))
    e('s_addc_u32 s%d, s%d, 0' % (dst + 1, base + 1))

THR = [0]
def thr():
    if THR[0]:
        e('s_waitcnt vmcnt(%d)' % (THR[0] - 1))

def load_block(dst, sbase, rs, vtmp):
    if isinstance(rs, int):
        e('v_mul_u32_u24 v%d, %d, v2' % (vtmp, 8 * rs))
    else:
        e('s_lshl_b32 s59, %s, 3' % rs)
        e('v_mul_u32_u24 v%d, s59, v2' % vtmp)
    e('v_lshl_add_u32 v%d, v3, 4, v%d' % (vtmp, vtmp))
    for i in range(8):
        thr()
        e('global_load_dwordx4 %s, v%d, %s%s' % (vr(dst + 4 * i), vtmp, sr(sbase), NT))
        if i < 7:
            e('v_add_u32 v%d, %s, v%d' % (vtmp, str(rs), vtmp))

def load_K(vtmp, lo, hi):
    if lo >= hi:
        return
    e('v_lshlrev_b32 v%d, 8, v3' % vtmp)
    e('v_lshl_add_u32 v%d, v2, 4, v%d' % (vtmp, vtmp))
    cur = 0
    for n in range(lo, hi):
        T, t = n >> 2, n & 3
        if T * 4096 != cur:
            e('v_add_u32 v%d, %d, v%d' % (vtmp, T * 4096 - cur, vtmp))
            cur = T * 4096
        thr()
        e('global_load_dwordx4 %s, v%d, %s offset:%d%s' % (ar(16 * T + 4 * t), vtmp, sr(S_KB), t * 64, NT))

def csync_inc():
    if OPT['csync']:
        e('v_mov_b32 v4, %d' % (NONCE + 16))
        e('v_mov_b32 v5, 1')
        e('s_mov_b64 exec, 1')
        e('ds_add_u32 v4, v5')
        e('s_mov_b64 exec, -1')

def load_V(vtmp):
    e('v_lshlrev_b32 v%d, 10, v2' % vtmp)
    e('v_lshl_add_u32 v%d, v3, 4, v%d' % (vtmp, vtmp))
    e('v_add_u32 v%d, 0x1000, v%d' % (vtmp, vtmp))
    for B in range(2):
        for j in range(8):
            off = (j >> 2) * 4096 - 4096 + (j & 3) * 256
            thr()
            e('global_load_dwordx4 %s, v%d, %s offset:%d%s' % (vr(VV + 32 * B + 4 * j), vtmp, sr(S_VB), off, NT))
        if B == 0:
            e('v_add_u32 v%d, 0x2000, v%d' % (vtmp, vtmp))

def transpose_block(T):
    for c in range(8):
        d = c >> 1
        sel = S_SEL0 if c % 2 == 0 else S_SEL1
        for jj in range(4):
            e('v_perm_b32 v%d, v%d, v%d, s%d' % (TMP + 4 * c + jj, T + 4 * (2 * jj + 1) + d, T + 4 * (2 * jj) + d, sel))

def gemv_block(T, A, acc, agpr, first=True):
    transpose_block(T)
    e('s_nop 1')
    f = ar if agpr else vr
    for c in range(8):
        e('v_mfma_f32_16x16x32_bf16 %s, %s, %s, %s' % (f(acc + 4 * c), vr(A), vr(TMP + 4 * c), '0' if first else f(acc + 4 * c)))

def write_part(acc, agpr, vaddr, nlanes_mask, cstride=None):
    e('s_nop 7')
    for i in range(4):
        for c in range(8):
            if agpr:
                e('v_accvgpr_read_b32 v%d, a%d' % (TMP + 8 * i + c, acc + 4 * c + i))
            else:
                e('v_mov_b32 v%d, v%d' % (TMP + 8 * i + c, acc + 4 * c + i))
    e('s_mov_b32 exec_lo, %s' % nlanes_mask)
    e('s_mov_b32 exec_hi, 0')
    for i in range(4):
        e('ds_write_b128 v%d, %s offset:%d' % (vaddr, vr(TMP + 8 * i), i * 512))
        e('ds_write_b128 v%d, %s offset:%d' % (vaddr, vr(TMP + 8 * i + 4), i * 512 + 16))
    e('s_mov_b64 exec, -1')

def bf16_round(dst, src):
    e('v_cvt_pk_bf16_f32 v%d, v%d, v%d' % (dst, src, src))
    e('v_and_b32 v%d, 0xffff0000, v%d' % (dst, dst))

def row_allreduce(op, v):
    for sh in (8, 4, 2, 1):
        e('s_nop 1')
        e('v_%s_f32_dpp v%d, v%d, v%d row_ror:%d row_mask:0xf bank_mask:0xf' % (op, v, v, v, sh))

def xrow_allreduce(op, v, t):
    e('v_mov_b32 v%d, v%d' % (t, v))
    e('s_nop 1')
    e('v_permlane16_swap_b32 v%d, v%d' % (v, t))
    e('s_nop 1')
    e('v_%s_f32 v%d, v%d, v%d' % (op, v, v, t))
    e('v_mov_b32 v%d, v%d' % (t, v))
    e('s_nop 1')
    e('v_permlane32_swap_b32 v%d, v%d' % (v, t))
    e('s_nop 1')
    e('v_%s_f32 v%d, v%d, v%d' % (op, v, v, t))

def addtag(regs4):
    for k, rg in enumerate(regs4):
        e('v_bfi_b32 v%d, v%d, s%d, v%d' % (rg, VFF, S_TG + (k & 3), rg))

def xrow_batch(op, regs, tmps):
    for rg, t in zip(regs, tmps):
        e('v_mov_b32 v%d, v%d' % (t, rg))
    if len(regs) < 3:
        e('s_nop 1')
    for rg, t in zip(regs, tmps):
        e('v_permlane16_swap_b32 v%d, v%d' % (rg, t))
    for rg, t in zip(regs, tmps):
        e('v_%s_f32 v%d, v%d, v%d' % (op, rg, rg, t))
    for rg, t in zip(regs, tmps):
        e('v_mov_b32 v%d, v%d' % (t, rg))
    if len(regs) < 3:
        e('s_nop 1')
    for rg, t in zip(regs, tmps):
        e('v_permlane32_swap_b32 v%d, v%d' % (rg, t))
    for rg, t in zip(regs, tmps):
        e('v_%s_f32 v%d, v%d, v%d' % (op, rg, rg, t))

def check_tags(quads, vbad, vt):
    first = True
    for q in quads:
        for k in (0, 2):
            if first:
                e('v_xor_b32 v%d, s%d, v%d' % (vbad, S_TG + k, q + k))
                e('v_xor_b32 v%d, s%d, v%d' % (vt, S_TG + k + 1, q + k + 1))
                e('v_or_b32 v%d, v%d, v%d' % (vbad, vbad, vt))
                first = False
            else:
                e('v_xor_b32 v%d, s%d, v%d' % (vt, S_TG + k, q + k))
                e('v_xor_b32 v%d, s%d, v%d' % (vt + 1, S_TG + k + 1, q + k + 1))
                e('v_or3_b32 v%d, v%d, v%d, v%d' % (vbad, vbad, vt, vt + 1))
    e('v_and_b32 v%d, 0xff, v%d' % (vbad, vbad))
    e('v_cmp_ne_u32 vcc, 0, v%d' % vbad)

def spin_loop(body_issue, tagregs, vbad, vt, sleep=2):
    if OPT['nohand'] or OPT['nold']:
        e('s_waitcnt vmcnt(0)')
        return
    if OPT['once']:
        body_issue()
        e('s_waitcnt vmcnt(0)')
        return
    top = uid('L_spin'); done = uid('L_spun')
    e('s_mov_b32 s%d, 0' % S_SPIN)
    lab(top)
    body_issue()
    e('s_waitcnt vmcnt(0)')
    check_tags(tagregs, vbad, vt)
    e('s_nop 1')
    e('s_cbranch_vccz %s' % done)
    e('s_add_u32 s%d, s%d, 1' % (S_SPIN, S_SPIN))
    e('s_cmp_ge_u32 s%d, %d' % (S_SPIN, SPIN_MAX))
    e('s_cbranch_scc1 %s' % done)
    if sleep:
        e('s_sleep %d' % sleep)
    e('s_branch %s' % top)
    lab(done)

def spin_each(issue_fns, quads, vbad, vt, sleep=0):
    if not OPT['each']:
        def body():
            for f in issue_fns:
                f()
        spin_loop(body, quads, vbad, vt, sleep=max(sleep, 0))
        return
    for f in issue_fns:
        f()
    n = len(issue_fns)
    e('s_mov_b32 s%d, 0' % S_SPIN)
    for i, (f, q) in enumerate(zip(issue_fns, quads)):
        top = uid('L_se'); done = uid('L_sed')
        e('s_waitcnt vmcnt(%d)' % (n - 1 - i))
        lab(top)
        check_tags([q], vbad, vt)
        e('s_nop 1')
        e('s_cbranch_vccz %s' % done)
        if OPT['once']:
            e('s_branch %s' % done)
        e('s_add_u32 s%d, s%d, 1' % (S_SPIN, S_SPIN))
        e('s_cmp_ge_u32 s%d, %d' % (S_SPIN, SPIN_MAX))
        e('s_cbranch_scc1 %s' % done)
        if sleep:
            e('s_sleep %d' % sleep)
        f()
        e('s_waitcnt vmcnt(0)')
        e('s_branch %s' % top)
        lab(done)

def untag(quads):
    for q in quads:
        for k in range(4):
            e('v_and_b32 v%d, 0xffffff00, v%d' % (q + k, q + k))

def lds_flag_wait(off):
    top = uid('L_fl'); done = uid('L_fld')
    e('s_mov_b32 s%d, 0' % S_SPIN)
    e('v_mov_b32 v4, %d' % off)
    lab(top)
    e('ds_read_b32 v5, v4')
    e('s_waitcnt lgkmcnt(0)')
    e('v_readfirstlane_b32 s44, v5')
    e('s_cmp_lg_u32 s44, 0')
    e('s_cbranch_scc1 %s' % done)
    e('s_add_u32 s%d, s%d, 1' % (S_SPIN, S_SPIN))
    e('s_cmp_ge_u32 s%d, %d' % (S_SPIN, SPIN_MAX * 20))
    e('s_cbranch_scc1 %s' % done)
    e('s_sleep 1')
    e('s_branch %s' % top)
    lab(done)

def lds_flag_set(off):
    e('s_waitcnt lgkmcnt(0)')
    e('v_mov_b32 v4, %d' % off)
    e('v_mov_b32 v5, 1')
    e('ds_write_b32 v4, v5')

def sigmoid_mul(dst, x, arg, t):
    e('v_exp_f32 v%d, v%d' % (t, arg))
    e('s_nop 0')
    e('v_add_f32 v%d, 1.0, v%d' % (t, t))
    e('v_rcp_f32 v%d, v%d' % (t, t))
    e('s_nop 0')
    e('v_mul_f32 v%d, v%d, v%d' % (dst, x, t))

def red_lane_map(s_rhi_cp, vlds, vglb):
    e('v_and_b32 v10, 3, v1')
    e('v_bfe_u32 v11, v1, 2, 3')
    e('s_and_b32 s45, %s, 1' % s_rhi_cp)
    e('s_lshl_b32 s45, s45, 3')
    e('v_add_u32 v11, s45, v11')
    e('v_lshrrev_b32 v9, 5, v1')
    e('s_and_b32 s45, %s, 2' % s_rhi_cp)
    e('v_add_u32 v9, s45, v9')
    e('v_lshlrev_b32 v%d, 4, v11' % vlds)
    e('v_lshl_add_u32 v%d, v10, 2, v%d' % (vlds, vlds))
    e('v_lshl_add_u32 v%d, v9, 9, v%d' % (vlds, vlds))
    e('v_lshlrev_b32 v%d, 6, v11' % vglb)
    e('v_lshl_add_u32 v%d, v9, 4, v%d' % (vglb, vglb))

def csync_wait():
    if OPT['csync']:
        top = uid('L_cs'); done = uid('L_csd')
        e('s_mov_b32 s%d, 0' % S_SPIN)
        e('v_mov_b32 v4, %d' % (NONCE + 16))
        lab(top)
        e('ds_read_b32 v5, v4')
        e('s_waitcnt lgkmcnt(0)')
        e('v_readfirstlane_b32 s44, v5')
        e('s_cmp_ge_u32 s44, 8')
        e('s_cbranch_scc1 %s' % done)
        e('s_add_u32 s%d, s%d, 1' % (S_SPIN, S_SPIN))
        e('s_cmp_ge_u32 s%d, %d' % (S_SPIN, SPIN_MAX * 20))
        e('s_cbranch_scc1 %s' % done)
        e('s_sleep 1')
        e('s_branch %s' % top)
        lab(done)

def late_loads():
    csync_wait()
    e('s_cmp_ge_u32 s%d, 4' % S_WAVE)
    e('s_cselect_b32 s44, 1, 0')
    e('s_cmp_lt_u32 s2, 224')
    e('s_cselect_b32 s45, 1, 0')
    e('s_and_b32 s57, s44, s45')
    lo = uid('L_llo'); dn = uid('L_lld')
    e('s_cmp_lt_u32 s%d, 4' % S_WAVE)
    e('s_cbranch_scc1 %s' % lo)
    e('s_cmp_lg_u32 s57, 0')
    e('s_cselect_b64 exec, -1, 0')
    load_block(T2, S_WDB, 2048, 5)
    e('s_mov_b64 exec, -1')
    e('s_branch %s' % dn)
    lab(lo)
    load_block(T1, S_WOB, 2048, 4)
    lab(dn)

e('s_cmp_ge_u32 s2, 256')
e('s_cbranch_scc1 L_end')
stamp(0)
e('s_load_dwordx16 s[4:19], s[0:1], 0')
e('s_load_dwordx8 s[20:27], s[0:1], 64')
e('v_and_b32 v1, 63, v0')
e('v_lshrrev_b32 v2, 4, v1')
e('v_and_b32 v3, 15, v1')
e('v_lshrrev_b32 v4, 6, v0')
e('s_mov_b32 s%d, 0x05040100' % S_SEL0)
e('v_readfirstlane_b32 s%d, v4' % S_WAVE)
e('s_mov_b32 s%d, 0x07060302' % S_SEL1)
e('s_waitcnt lgkmcnt(0)')

if OPT['pref']:
    cmt('---- code prefetch into L2 (wave 7 of the first 16 WGs)')
    e('s_cmp_lg_u32 s%d, 7' % S_WAVE)
    e('s_cbranch_scc1 L_nopref')
    e('s_cmp_ge_u32 s2, 16')
    e('s_cbranch_scc1 L_nopref')
    e('s_getpc_b64 s[44:45]')
    e('v_lshlrev_b32 v4, 4, v1')
    e('PREFETCH_PLACEHOLDER')
    lab('L_nopref')

e('s_or_b32 s44, s2, s%d' % S_WAVE)
e('s_cmp_lg_u32 s44, 0')
e('s_cbranch_scc1 L_nononce')
e('s_memrealtime s[44:45]')
e('s_waitcnt lgkmcnt(0)')
e('s_or_b32 s44, s44, 1')
e('v_mov_b32 v4, s44')
e('v_mov_b32 v5, 0')
e('s_mov_b64 exec, 1')
e('global_store_dword v5, v4, %s sc1' % sr(S_DBG))
e('s_mov_b64 exec, -1')
lab('L_nononce')

e('s_sub_u32 s58, s%d, 1' % S_WAVE)
e('s_cmp_ge_u32 s58, 4')
e('s_cbranch_scc1 L_nox')
e('s_lshl_b32 s44, s58, 11')
e('v_lshlrev_b32 v4, 4, v1')
e('v_add_u32 v4, s44, v4')
e('global_load_dwordx4 %s, v4, %s' % (vr(TMP), sr(S_X)))
e('global_load_dwordx4 %s, v4, %s offset:1024' % (vr(TMP + 4), sr(S_X)))
lab('L_nox')

e('s_lshr_b32 s44, s2, 5')
e('s_lshl_b32 s44, s44, 7')
e('s_and_b32 s45, s%d, 3' % S_WAVE)
e('s_lshl_b32 s45, s45, 5')
e('s_add_u32 s47, s44, s45')
e('s_lshl_b32 s46, s47, 13')
e('s_and_b32 s45, s2, 31')
e('s_lshl_b32 s45, s45, 8')
e('s_add_u32 s46, s46, s45')
add64(S_T1, S_WQ, 46)
e('s_lshr_b32 s44, s2, 1')
e('s_lshl_b32 s44, s44, 16')
e('s_and_b32 s45, s2, 1')
e('s_lshl_b32 s45, s45, 10')
e('s_add_u32 s44, s44, s45')
e('s_and_b32 s45, s%d, 3' % S_WAVE)
e('s_lshl_b32 s45, s45, 8')
e('s_add_u32 s44, s44, s45')
add64(S_WOB, S_WO, 44)
e('s_cmp_ge_u32 s2, 112')
e('s_cselect_b32 s48, 1, 0')
e('s_mul_i32 s44, s48, 112')
e('s_sub_u32 s44, s2, s44')
e('s_mul_i32 s45, s44, 2341')
e('s_lshr_b32 s49, s45, 16')
e('s_mul_i32 s45, s49, 28')
e('s_sub_u32 s50, s44, s45')
e('s_lshl_b32 s44, s49, 8')
e('s_lshl_b32 s45, s%d, 5' % S_WAVE)
e('s_add_u32 s51, s44, s45')
e('s_mul_i32 s44, s51, 7168')
e('s_lshl_b32 s45, s50, 8')
e('s_add_u32 s44, s44, s45')
e('s_cmp_eq_u32 s48, 0')
e('s_cselect_b32 s52, s%d, s%d' % (S_WG, S_WU))
e('s_cselect_b32 s53, s%d, s%d' % (S_WG + 1, S_WU + 1))
add64(S_T2, 52, 44)
e('s_lshl_b32 s44, s2, 17')
e('s_lshl_b32 s45, s%d, 14' % S_WAVE)
e('s_add_u32 s44, s44, s45')
add64(S_KB, S_K, 44)
add64(S_VB, S_V, 44)
e('s_lshr_b32 s44, s2, 2')
e('s_lshl_b32 s44, s44, 6')
e('s_lshr_b32 s45, s%d, 1' % S_WAVE)
e('s_and_b32 s45, s45, 1')
e('s_lshl_b32 s45, s45, 5')
e('s_add_u32 s44, s44, s45')
e('s_lshl_b32 s44, s44, 11')
e('s_and_b32 s45, s2, 3')
e('s_lshl_b32 s45, s45, 9')
e('s_add_u32 s44, s44, s45')
e('s_and_b32 s45, s%d, 1' % S_WAVE)
e('s_lshl_b32 s45, s45, 8')
e('s_add_u32 s44, s44, s45')
add64(S_WDB, S_WD, 44)

e('s_cmp_ge_u32 s58, 4')
e('s_cbranch_scc1 L_noln')
e('s_waitcnt vmcnt(0)')
X = TMP + 8
for i in range(8):
    e('v_lshlrev_b32 v%d, 16, v%d' % (X + 2 * i, TMP + i))
    e('v_and_b32 v%d, 0xffff0000, v%d' % (X + 2 * i + 1, TMP + i))
e('v_add_f32 v4, v%d, v%d' % (X, X + 1))
for i in range(2, 16):
    e('v_add_f32 v4, v4, v%d' % (X + i))
row_allreduce('add', 4)
xrow_allreduce('add', 4, 5)
e('v_mul_f32 v4, 0x3a800000, v4')
e('v_sub_f32 v5, v%d, v4' % X)
e('v_mul_f32 v6, v5, v5')
for i in range(1, 16):
    e('v_sub_f32 v5, v%d, v4' % (X + i))
    e('v_fmac_f32 v6, v5, v5')
row_allreduce('add', 6)
xrow_allreduce('add', 6, 5)
e('v_mul_f32 v6, 0x3a800000, v6')
bf16_round(4, 4)
bf16_round(6, 6)
e('v_add_f32 v6, %s, v6' % f32(1e-5))
bf16_round(6, 6)
e('v_sqrt_f32 v6, v6')
e('s_nop 0')
bf16_round(6, 6)
e('v_rcp_f32 v7, v6')
e('s_nop 0')
for i in range(16):
    e('v_sub_f32 v5, v%d, v4' % (X + i))
    bf16_round(5, 5)
    e('v_mul_f32 v8, v5, v7')
    e('v_fma_f32 v9, -v8, v6, v5')
    e('v_fma_f32 v%d, v9, v7, v8' % (X + i))
for i in range(8):
    e('v_cvt_pk_bf16_f32 v%d, v%d, v%d' % (TMP + i, X + 2 * i, X + 2 * i + 1))
e('s_lshl_b32 s44, s58, 11')
e('v_lshlrev_b32 v4, 4, v1')
e('v_add_u32 v4, s44, v4')
e('ds_write_b128 v4, %s offset:%d' % (vr(TMP), XN))
e('ds_write_b128 v4, %s offset:%d' % (vr(TMP + 4), XN + 1024))
lab('L_noln')

e('s_cmp_lt_u32 s%d, 4' % S_WAVE)
e('s_cselect_b64 exec, -1, 0')
load_block(T1, S_T1, 8192, 4)
e('s_cmp_lt_u32 s2, 224')
e('s_cselect_b64 exec, -1, 0')
load_block(T2, S_T2, 7168, 5)
e('s_cmp_ge_u32 s%d, 3' % S_WAVE)
e('s_cselect_b64 exec, -1, 0')
load_K(6, 0, NKE)
e('s_mov_b64 exec, -1')

e('s_cmp_lg_u32 s%d, 0' % S_WAVE)
e('s_cbranch_scc1 L_noclr')
e('v_mov_b32 v4, %d' % NONCE)
e('v_mov_b32 v6, 0')
e('v_mov_b32 v7, 0')
e('ds_write_b64 v4, v[6:7] offset:8')
e('ds_write_b64 v4, v[6:7] offset:16')
e('ds_write_b64 v4, v[6:7] offset:24')
lab('L_noclr')
stamp(1)
e('s_waitcnt lgkmcnt(0)')
e('s_barrier')
stamp(2)

e('v_and_b32 v4, 3, v3')
e('v_lshlrev_b32 v4, 11, v4')
e('v_lshl_add_u32 v4, v2, 4, v4')
e('s_lshl_b32 s44, s%d, 11' % S_WAVE)
e('v_lshlrev_b32 v6, 5, v3')
e('v_add_u32 v6, s44, v6')
e('s_cmp_ge_u32 s%d, 4' % S_WAVE)
e('s_cbranch_scc1 L_noq')
e('s_lshl_b32 s44, s47, 1')
e('v_add_u32 v5, s44, v4')
e('ds_read_b128 %s, v5 offset:%d' % (vr(AF), XN))
e('s_waitcnt vmcnt(%d) lgkmcnt(0)' % (8 + NKE))
gemv_block(T1, AF, VV, False)
e('v_add_u32 v7, %d, v6' % P1)
write_part(VV, False, 7, '0xffff', 256)
lab('L_noq')
e('s_cmp_ge_u32 s2, 224')
e('s_cbranch_scc1 L_nogu')
e('s_lshl_b32 s44, s51, 1')
e('v_add_u32 v5, s44, v4')
e('ds_read_b128 %s, v5 offset:%d' % (vr(AF), XN))
e('s_waitcnt vmcnt(%d) lgkmcnt(0)' % NKE)
gemv_block(T2, AF, VV + 32, False)
e('v_add_u32 v7, %d, v6' % P2)
write_part(VV + 32, False, 7, '0xffff', 256)
lab('L_nogu')

e('s_cmp_lg_u32 s%d, 0' % S_WAVE)
e('s_cbranch_scc1 L_nononce2')
e('s_mov_b32 s%d, 0' % S_SPIN)
e('v_mov_b32 v5, 0')
lab('L_noncepoll')
e('global_load_dword v4, v5, %s sc1' % sr(S_DBG))
e('s_waitcnt vmcnt(0)')
e('v_readfirstlane_b32 s44, v4')
e('s_cmp_lg_u32 s44, 0')
e('s_cbranch_scc1 L_noncegot')
e('s_add_u32 s%d, s%d, 1' % (S_SPIN, S_SPIN))
e('s_cmp_ge_u32 s%d, %d' % (S_SPIN, SPIN_MAX))
e('s_cbranch_scc1 L_noncegot')
e('s_sleep 1')
e('s_branch L_noncepoll')
lab('L_noncegot')
e('v_mov_b32 v5, %d' % NONCE)
e('ds_write_b32 v5, v4')
lab('L_nononce2')
stamp(3)
e('s_waitcnt lgkmcnt(0)')
e('s_barrier')
e('v_mov_b32 v5, %d' % NONCE)
e('ds_read_b32 v4, v5')
stamp(4)

e('v_mov_b32 v%d, 0xff' % VFF)
e('s_waitcnt lgkmcnt(0)')
e('v_readfirstlane_b32 s%d, v4' % S_TAG)
e('s_nop 3')
e('s_and_b32 s%d, s%d, 0xff' % (S_TG, S_TAG))
e('s_bfe_u32 s%d, s%d, 0x80008' % (S_TG + 1, S_TAG))
e('s_bfe_u32 s%d, s%d, 0x80010' % (S_TG + 2, S_TAG))
e('s_lshr_b32 s%d, s%d, 24' % (S_TG + 3, S_TAG))
e('s_cmp_lt_u32 s%d, 4' % S_WAVE)
e('s_cbranch_scc1 L_pubdone')
e('s_and_b32 s44, s%d, 1' % S_WAVE)
e('s_lshl_b32 s44, s44, 1')
e('v_lshrrev_b32 v6, 5, v1')
e('v_add_u32 v6, s44, v6')
e('v_and_b32 v7, 31, v1')
e('v_lshlrev_b32 v7, 4, v7')
e('s_cmp_lt_u32 s%d, 6' % S_WAVE)
e('s_cbranch_scc0 L_pubgu')
e('s_lshr_b32 s46, s2, 5')
e('s_lshl_b32 s46, s46, 16')
e('s_and_b32 s54, s2, 31')
e('s_lshl_b32 s54, s54, 9')
e('s_add_u32 s46, s46, s54')
e('s_add_u32 s46, s46, %d' % QP)
e('v_lshl_add_u32 v4, v6, 9, v7')
for v in range(4):
    e('ds_read_b128 %s, v4 offset:%d' % (vr(TMP + 4 * v), P1 + v * 2048))
e('v_lshlrev_b32 v5, 14, v6')
e('v_add3_u32 v5, v5, v7, s46')
e('s_waitcnt lgkmcnt(0)')
for k in range(4):
    e('v_add_f32 v%d, v%d, v%d' % (8 + k, TMP + k, TMP + 4 + k))
for v in range(2, 4):
    for k in range(4):
        e('v_add_f32 v%d, v%d, v%d' % (8 + k, 8 + k, TMP + 4 * v + k))
e('s_branch L_pubgo')
lab('L_pubgu')
e('s_cmp_ge_u32 s2, 224')
e('s_cbranch_scc1 L_pubdone')
e('s_lshl_b32 s46, s48, 2')
e('s_add_u32 s46, s46, s49')
e('s_mul_i32 s46, s46, %d' % (4 * 14336))
e('s_lshl_b32 s54, s50, 9')
e('s_add_u32 s46, s46, s54')
e('s_add_u32 s46, s46, %d' % GP)
e('v_lshl_add_u32 v4, v6, 9, v7')
for v in range(8):
    e('ds_read_b128 %s, v4 offset:%d' % (vr(TMP + 4 * v), P2 + v * 2048))
e('v_mul_u32_u24 v5, 14336, v6')
e('v_add3_u32 v5, v5, v7, s46')
e('s_waitcnt lgkmcnt(0)')
for k in range(4):
    e('v_add_f32 v%d, v%d, v%d' % (8 + k, TMP + k, TMP + 4 + k))
for v in range(2, 8):
    for k in range(4):
        e('v_add_f32 v%d, v%d, v%d' % (8 + k, 8 + k, TMP + 4 * v + k))
lab('L_pubgo')
addtag([8, 9, 10, 11])
e('global_store_dwordx4 v5, v[8:11], %s sc1' % sr(S_WS))
lab('L_pubdone')

e('s_cmp_ge_u32 s%d, 3' % S_WAVE)
e('s_cbranch_scc1 L_bulk')
THR[0] = OPT['thrg']
load_K(6, 0, 16)
THR[0] = 0
e('s_cmp_lg_u32 s%d, 2' % S_WAVE)
e('s_cbranch_scc1 L_notl1')
e('s_lshl_b32 s44, s2, 8')
e('s_add_u32 s44, s44, %d' % QP)
e('v_lshlrev_b32 v4, 16, v2')
e('v_lshl_add_u32 v4, v3, 4, v4')
e('v_add_u32 v4, s44, v4')
e('v_add_u32 v5, 0x40000, v4')
def _q1():
    e('global_load_dwordx4 %s, v4, %s sc1' % (vr(T1), sr(S_WS)))
    e('global_load_dwordx4 %s, v5, %s sc1' % (vr(T1 + 4), sr(S_WS)))
spin_loop(_q1, [T1, T1 + 4], 8, 10, sleep=4)
untag([T1, T1 + 4])
for k in range(4):
    e('v_add_f32 v%d, v%d, v%d' % (8 + k, T1 + k, T1 + 4 + k))
xrow_batch('add', [8, 9, 10, 11], [TMP + k for k in range(4)])
for k in range(4):
    bf16_round(8 + k, 8 + k)
addtag([8, 9, 10, 11])
e('s_lshl_b32 s44, s2, 8')
e('s_add_u32 s44, s44, %d' % Q2)
e('v_lshlrev_b32 v4, 4, v3')
e('v_add_u32 v4, s44, v4')
e('s_mov_b64 exec, 0xffff')
e('global_store_dwordx4 v4, v[8:11], %s sc1' % sr(S_WS))
e('s_mov_b64 exec, -1')
stamp(5)
e('s_branch L_vld')
lab('L_notl1')
THR[0] = OPT['thrg']
load_V(6)
csync_inc()
THR[0] = 0
e('s_cmp_eq_u32 s%d, 1' % S_WAVE)
e('s_cbranch_scc1 L_hgather')
e('s_lshr_b32 s44, s2, 4')
e('s_lshl_b32 s44, s44, 12')
e('s_add_u32 s44, s44, %d' % Q2)
e('v_lshlrev_b32 v4, 4, v1')
e('v_add_u32 v4, s44, v4')
def _q():
    for i in range(4):
        e('global_load_dwordx4 %s, v4, %s offset:%d sc1' % (vr(T1 + 4 * i), sr(S_WS), i * 1024))
spin_loop(_q, [T1 + 4 * i for i in range(4)], 8, 10, sleep=2)
e('v_lshrrev_b32 v5, 5, v1')
e('v_mul_u32_u24 v5, %d, v5' % QLS)
e('v_and_b32 v6, 31, v1')
e('v_lshl_add_u32 v5, v6, 3, v5')
for i in range(4):
    e('v_perm_b32 v6, v%d, v%d, s%d' % (T1 + 4 * i + 1, T1 + 4 * i, S_SEL1))
    e('v_perm_b32 v7, v%d, v%d, s%d' % (T1 + 4 * i + 3, T1 + 4 * i + 2, S_SEL1))
    e('ds_write_b64 v5, v[6:7] offset:%d' % (QL + 2 * QLS * i))
lds_flag_set(NONCE + 8)
stamp(5)
e('s_branch L_late_ld')

lab('L_hgather')
e('s_cmp_ge_u32 s2, 224')
e('s_cbranch_scc1 %s' % ('L_vld' if OPT['gq'] else 'L_late_ld'))
e('s_lshr_b32 s44, s2, 2')
e('s_lshl_b32 s44, s44, 8')
e('s_add_u32 s44, s44, %d' % GP)
e('v_mul_u32_u24 v4, 14336, v2')
e('v_lshl_add_u32 v4, v3, 4, v4')
e('v_add_u32 v4, s44, v4')
def _h():
    for i in range(8):
        e('v_add_u32 v5, %d, v4' % ((((i & 1) * 4 + (i >> 1)) * 4) * 14336))
        e('global_load_dwordx4 %s, v5, %s sc1' % (vr(T1 + 4 * i), sr(S_WS)))
if not OPT['skiph']:
    spin_loop(_h, [T1 + 4 * i for i in range(8)], 8, 10, sleep=4)
untag([T1 + 4 * i for i in range(8)])
for m in range(2):
    for k in range(4):
        d = TMP + 4 * m + k
        e('v_add_f32 v%d, v%d, v%d' % (d, T1 + 4 * m + k, T1 + 8 + 4 * m + k))
        e('v_add_f32 v%d, v%d, v%d' % (d, d, T1 + 16 + 4 * m + k))
        e('v_add_f32 v%d, v%d, v%d' % (d, d, T1 + 24 + 4 * m + k))
        bf16_round(d, d)
for k in range(4):
    g_ = TMP + k; u_ = TMP + 4 + k
    e('v_mul_f32 v4, v%d, v%d' % (g_, g_))
    e('v_mul_f32 v4, v4, v%d' % g_)
    e('v_mov_b32 v5, %s' % f32(0.044715))
    e('v_fma_f32 v4, v4, v5, v%d' % g_)
    e('v_mul_f32 v4, %s, v4' % f32(-2.0 * 0.7978845608028654 * 1.4426950408889634))
    sigmoid_mul(6, g_, 4, 5)
    bf16_round(6, 6)
    e('v_mul_f32 v%d, v6, v%d' % (g_, u_))
e('v_lshlrev_b32 v5, 3, v1')
e('v_cvt_pk_bf16_f32 v6, v%d, v%d' % (TMP, TMP + 1))
e('v_cvt_pk_bf16_f32 v7, v%d, v%d' % (TMP + 2, TMP + 3))
e('ds_write_b64 v5, v[6:7] offset:%d' % HL)
lds_flag_set(NONCE + 12)
stamp(5)
e('s_branch %s' % ('L_vld' if OPT['gq'] else 'L_late_ld'))

lab('L_bulk')
THR[0] = OPT['thr']
load_K(6, NKE, 16)
lab('L_vld')
THR[0] = OPT['thrv']
load_V(6)
csync_inc()
lab('L_late_ld')
if OPT['late'] == 2:
    THR[0] = 0
if OPT['late'] in (0, 2):
    late_loads()
THR[0] = 0
stamp(6)
NKR = 16 - NKE

lds_flag_wait(NONCE + 8)
stamp(7)
QF = TMP
SV = TMP + 16
e('v_and_b32 v4, 7, v3')
e('v_mul_u32_u24 v4, %d, v4' % QLS)
e('v_lshl_add_u32 v4, v2, 4, v4')
for t in range(4):
    e('ds_read_b128 %s, v4 offset:%d' % (vr(QF + 4 * t), QL + 64 * t))
LX = 16 if OPT['late'] in (0, 2) else 0
e('s_waitcnt vmcnt(%d) lgkmcnt(0)' % (16 + LX))
stamp(8)
for T in range(4):
    for t in range(4):
        e('v_mfma_f32_16x16x32_bf16 %s, %s, %s, %s' % (vr(SV + 4 * T), ar(16 * T + 4 * t), vr(QF + 4 * t), '0' if t == 0 else vr(SV + 4 * T)))
e('s_nop 7')
e('s_mov_b32 s44, %s' % f32(128 ** -0.5))
for i in range(0, 16, 2):
    e('v_cvt_pk_bf16_f32 v4, v%d, v%d' % (SV + i, SV + i + 1))
    e('v_lshlrev_b32 v5, 16, v4')
    e('v_and_b32 v6, 0xffff0000, v4')
    e('v_mul_f32 v5, s44, v5')
    e('v_mul_f32 v6, s44, v6')
    e('v_cvt_pk_bf16_f32 v4, v5, v6')
    e('v_lshlrev_b32 v%d, 16, v4' % (SV + i))
    e('v_and_b32 v%d, 0xffff0000, v4' % (SV + i + 1))
e('v_max3_f32 v8, v%d, v%d, v%d' % (SV, SV + 1, SV + 2))
for i in range(3, 15, 2):
    e('v_max3_f32 v8, v8, v%d, v%d' % (SV + i, SV + i + 1))
e('v_max_f32 v8, v8, v%d' % (SV + 15))
xrow_allreduce('max', 8, 5)
e('s_mov_b32 s44, 0x%x' % LOG2E)
e('v_mul_f32 v5, s44, v8')
for i in range(16):
    e('v_fma_f32 v%d, v%d, s44, -v5' % (SV + i, SV + i))
    e('v_exp_f32 v%d, v%d' % (SV + i, SV + i))
e('s_nop 0')
e('v_add_f32 v9, v%d, v%d' % (SV, SV + 1))
for i in range(2, 16):
    e('v_add_f32 v9, v9, v%d' % (SV + i))
xrow_allreduce('add', 9, 5)
for i in range(8):
    e('v_cvt_pk_bf16_f32 v%d, v%d, v%d' % (PREG + i, SV + 2 * i, SV + 2 * i + 1))
e('s_waitcnt vmcnt(%d)' % (8 + LX))
gemv_block(VV, PREG, 0, True, first=True)
e('s_waitcnt vmcnt(%d)' % LX)
gemv_block(VV + 32, PREG + 4, 0, True, first=False)
if OPT['late'] == 3:
    late_loads()
e('s_lshl_b32 s44, s%d, 6' % S_WAVE)
e('v_lshlrev_b32 v4, 3, v1')
e('v_add_u32 v4, s44, v4')
e('s_mov_b64 exec, 0xff')
e('ds_write_b64 v4, v[8:9] offset:%d' % MLL)
e('s_mov_b64 exec, -1')
e('s_lshl_b32 s44, s%d, 12' % S_WAVE)
e('s_add_u32 s44, s44, %d' % OV)
e('v_lshlrev_b32 v7, 5, v3')
e('v_lshl_add_u32 v7, v2, 11, v7')
e('v_add_u32 v7, s44, v7')
write_part(0, True, 7, '0xffffffff', 512)
e('s_waitcnt lgkmcnt(0)')
e('s_barrier')
stamp(10)

e('s_lshl_b32 s44, s%d, 3' % S_WAVE)
e('v_mov_b32 v4, s44')
for v in range(8):
    e('ds_read_b64 %s, v4 offset:%d' % (vr(TMP + 2 * v, 2), MLL + 64 * v))
e('s_lshl_b32 s44, s%d, 9' % S_WAVE)
e('s_add_u32 s44, s44, %d' % OV)
e('v_and_b32 v6, 31, v1')
e('v_lshlrev_b32 v6, 4, v6')
e('v_add_u32 v5, s44, v6')
for v in range(8):
    e('ds_read_b128 %s, v5 offset:%d' % (vr(VV + 4 * v), 4096 * v))
e('s_bfe_u32 s44, s2, 0x20004')
e('s_lshl_b32 s44, s44, 3')
e('s_add_u32 s44, s44, s%d' % S_WAVE)
e('s_lshr_b32 s45, s2, 6')
e('s_and_b32 s46, s2, 15')
e('s_lshl_b32 s54, s44, 15')
e('s_lshl_b32 s55, s45, 12')
e('s_add_u32 s54, s54, s55')
e('s_lshl_b32 s55, s46, 8')
e('s_add_u32 s54, s54, s55')
e('s_add_u32 s54, s54, %d' % OP)
e('v_bfe_u32 v7, v1, 4, 1')
e('v_lshlrev_b32 v7, 14, v7')
e('v_lshl_add_u32 v7, v3, 4, v7')
e('v_add_u32 v%d, s54, v7' % (TMP + 16))
e('s_lshl_b32 s44, s44, 2')
e('s_add_u32 s44, s44, s45')
e('s_lshl_b32 s44, s44, 8')
e('s_lshl_b32 s46, s46, 4')
e('s_add_u32 s44, s44, s46')
e('s_add_u32 s44, s44, %d' % ML)
e('v_mov_b32 v%d, s44' % (TMP + 17))
e('s_waitcnt lgkmcnt(0)')
e('v_max3_f32 v8, v%d, v%d, v%d' % (TMP, TMP + 2, TMP + 4))
e('v_max3_f32 v8, v8, v%d, v%d' % (TMP + 6, TMP + 8))
e('v_max3_f32 v8, v8, v%d, v%d' % (TMP + 10, TMP + 12))
e('v_max_f32 v8, v8, v%d' % (TMP + 14))
e('s_mov_b32 s46, 0x%x' % LOG2E)
for v in range(8):
    e('v_sub_f32 v%d, v%d, v8' % (TMP + 2 * v, TMP + 2 * v))
    e('v_mul_f32 v%d, s46, v%d' % (TMP + 2 * v, TMP + 2 * v))
    e('v_exp_f32 v%d, v%d' % (TMP + 2 * v, TMP + 2 * v))
e('s_nop 0')
for k in range(4):
    e('v_mul_f32 v%d, v%d, v%d' % (4 + k, TMP, VV + k))
e('v_mul_f32 v9, v%d, v%d' % (TMP, TMP + 1))
for v in range(1, 8):
    for k in range(4):
        e('v_fmac_f32 v%d, v%d, v%d' % (4 + k, TMP + 2 * v, VV + 4 * v + k))
    e('v_fmac_f32 v9, v%d, v%d' % (TMP + 2 * v, TMP + 2 * v + 1))
e('v_mov_b32 v10, v8')
e('v_mov_b32 v11, v9')
addtag([4, 5, 6, 7])
addtag([8, 9, 10, 11])
e('s_mov_b32 exec_hi, 0')
e('global_store_dwordx4 v%d, v[4:7], %s sc1' % (TMP + 16, sr(S_WS)))
e('s_mov_b64 exec, 1')
e('global_store_dwordx4 v%d, v[8:11], %s sc1' % (TMP + 17, sr(S_WS)))
e('s_mov_b64 exec, -1')
stamp(11)
if OPT['late'] == 1:
    late_loads()
e('s_cmp_eq_u32 s57, 0')
e('s_cbranch_scc1 L_nodown')
lds_flag_wait(NONCE + 12)
e('s_lshr_b32 s44, s%d, 1' % S_WAVE)
e('s_and_b32 s44, s44, 1')
e('s_lshl_b32 s44, s44, 6')
e('v_and_b32 v4, 3, v3')
e('v_lshlrev_b32 v4, 7, v4')
e('v_lshl_add_u32 v4, v2, 4, v4')
e('v_add_u32 v4, s44, v4')
e('ds_read_b128 %s, v4 offset:%d' % (vr(AF), HL))
e('s_waitcnt vmcnt(%d) lgkmcnt(0)' % (0 if OPT['late'] == 1 else 2))
gemv_block(T2, AF, T2, False)
e('s_sub_u32 s44, s%d, 4' % S_WAVE)
e('s_lshl_b32 s44, s44, 11')
e('s_add_u32 s44, s44, %d' % P3)
e('v_lshlrev_b32 v7, 5, v3')
e('v_add_u32 v7, s44, v7')
write_part(T2, False, 7, '0xffff', 256)
lab('L_nodown')

e('s_cmp_ge_u32 s%d, 4' % S_WAVE)
e('s_cbranch_scc1 L_nowog')
e('s_lshr_b32 s45, s2, 3')
e('s_lshl_b32 s44, s45, 15')
e('s_bfe_u32 s46, s2, 0x10002')
e('s_lshl_b32 s46, s46, 14')
e('s_add_u32 s44, s44, s46')
e('s_lshl_b32 s46, s%d, 12' % S_WAVE)
e('s_add_u32 s44, s44, s46')
e('s_bfe_u32 s46, s2, 0x10001')
e('s_lshl_b32 s46, s46, 7')
e('s_add_u32 s44, s44, s46')
e('s_add_u32 s44, s44, %d' % OP)
e('v_lshrrev_b32 v6, 3, v1')
e('v_and_b32 v7, 7, v1')
e('v_lshlrev_b32 v4, 8, v6')
e('v_lshl_add_u32 v4, v7, 4, v4')
e('v_add_u32 v4, s44, v4')
e('s_lshl_b32 s44, s45, 2')
e('s_add_u32 s44, s44, s%d' % S_WAVE)
e('s_lshl_b32 s44, s44, 8')
e('s_add_u32 s44, s44, %d' % ML)
e('v_lshlrev_b32 v5, 4, v6')
e('v_add_u32 v5, s44, v5')
e('s_waitcnt vmcnt(0)')
transpose_block(T1)
if OPT['wpp']:
    def _wp():
        e('global_load_dwordx4 %s, v5, %s sc1' % (vr(VV + 8), sr(S_WS)))
        e('global_load_dwordx4 %s, v5, %s offset:128 sc1' % (vr(VV + 12), sr(S_WS)))
    spin_loop(_wp, [VV + 8, VV + 12], 8, 10, sleep=OPT['slp'])
spin_each([lambda: e('global_load_dwordx4 %s, v5, %s sc1' % (vr(VV + 8), sr(S_WS))),
           lambda: e('global_load_dwordx4 %s, v5, %s offset:128 sc1' % (vr(VV + 12), sr(S_WS))),
           lambda: e('global_load_dwordx4 %s, v4, %s sc1' % (vr(VV), sr(S_WS))),
           lambda: e('global_load_dwordx4 %s, v4, %s offset:2048 sc1' % (vr(VV + 4), sr(S_WS)))],
          [VV + 8, VV + 12, VV, VV + 4], 8, 10, sleep=OPT['slp'])
stamp(12)
CT = VV + 16
untag([VV, VV + 4, VV + 8, VV + 12])
def red3(op, v, t):
    e('s_nop 1')
    e('v_%s_f32_dpp v%d, v%d, v%d row_ror:8 row_mask:0xf bank_mask:0xf' % (op, v, v, v))
    xrow_allreduce(op, v, t)
e('v_max_f32 v8, v%d, v%d' % (VV + 8, VV + 12))
red3('max', 8, 5)
e('s_mov_b32 s44, 0x%x' % LOG2E)
e('v_sub_f32 v9, v%d, v8' % (VV + 8))
e('v_sub_f32 v10, v%d, v8' % (VV + 12))
e('v_mul_f32 v9, s44, v9')
e('v_mul_f32 v10, s44, v10')
e('v_exp_f32 v9, v9')
e('v_exp_f32 v10, v10')
e('s_nop 0')
e('v_mul_f32 v8, v9, v%d' % (VV + 9))
e('v_fmac_f32 v8, v10, v%d' % (VV + 13))
for k in range(4):
    e('v_mul_f32 v%d, v9, v%d' % (CT + k, VV + k))
    e('v_fmac_f32 v%d, v10, v%d' % (CT + k, VV + 4 + k))
R5 = [8, CT, CT + 1, CT + 2, CT + 3]
e('s_nop 1')
for rg in R5:
    e('v_add_f32_dpp v%d, v%d, v%d row_ror:8 row_mask:0xf bank_mask:0xf' % (rg, rg, rg))
xrow_batch('add', R5, [CT + 8 + k for k in range(5)])
e('v_rcp_f32 v10, v8')
e('s_nop 0')
e('v_fma_f32 v11, -v8, v10, 1.0')
e('v_fma_f32 v10, v11, v10, v10')
for k in range(4):
    e('v_mul_f32 v%d, v10, v%d' % (CT + k, CT + k))
e('v_cvt_pk_bf16_f32 v8, v%d, v%d' % (CT, CT + 1))
e('v_cvt_pk_bf16_f32 v9, v%d, v%d' % (CT + 2, CT + 3))
e('s_lshl_b32 s44, s%d, 6' % S_WAVE)
e('v_lshlrev_b32 v4, 3, v7')
e('v_add_u32 v4, s44, v4')
e('s_mov_b64 exec, 0xff')
e('ds_write_b64 v4, v[8:9] offset:%d' % OL)
e('s_mov_b64 exec, -1')
e('v_and_b32 v4, 3, v3')
e('v_lshlrev_b32 v4, 6, v4')
e('v_lshl_add_u32 v4, v2, 4, v4')
e('s_lshl_b32 s44, s%d, 11' % S_WAVE)
e('s_add_u32 s44, s44, %d' % P4)
e('v_lshlrev_b32 v7, 5, v3')
e('v_add_u32 v7, s44, v7')
e('v_lshrrev_b32 v6, 5, v1')
e('v_lshlrev_b32 v6, 9, v6')
e('v_and_b32 v5, 31, v1')
e('v_lshl_add_u32 v6, v5, 4, v6')
e('v_add_u32 v6, s44, v6')
e('s_and_b32 s44, s2, 1')
e('s_lshl_b32 s44, s44, 18')
e('s_lshl_b32 s45, s%d, 16' % S_WAVE)
e('s_add_u32 s44, s44, s45')
e('s_lshr_b32 s45, s2, 1')
e('s_lshl_b32 s45, s45, 6')
e('s_add_u32 s44, s44, s45')
e('s_add_u32 s44, s44, %d' % SP)
e('v_lshrrev_b32 v16, 2, v5')
e('v_lshlrev_b32 v16, 13, v16')
e('v_lshrrev_b32 v17, 5, v1')
e('v_lshl_add_u32 v16, v17, 19, v16')
e('v_and_b32 v17, 3, v1')
e('v_lshl_add_u32 v16, v17, 4, v16')
e('v_add_u32 v16, s44, v16')
e('v_add_u32 v17, 0x100000, v16')
lab('L_nowog')
e('s_waitcnt lgkmcnt(0)')
e('s_barrier')
stamp(13)
e('s_cmp_ge_u32 s%d, 4' % S_WAVE)
e('s_cbranch_scc1 L_dpub')
e('ds_read_b128 %s, v4 offset:%d' % (vr(AF), OL))
e('s_waitcnt lgkmcnt(0)')
for c in range(8):
    e('v_mfma_f32_16x16x32_bf16 %s, %s, %s, 0' % (ar(4 * c), vr(AF), vr(TMP + 4 * c)))
write_part(0, True, 7, '0xffff')
e('s_waitcnt lgkmcnt(0)')
e('ds_read_b128 v[8:11], v6')
e('ds_read_b128 v[12:15], v6 offset:1024')
e('s_waitcnt lgkmcnt(0)')
addtag([8, 9, 10, 11])
addtag([12, 13, 14, 15])
e('global_store_dwordx4 v16, v[8:11], %s sc1' % sr(S_WS))
e('global_store_dwordx4 v17, v[12:15], %s sc1' % sr(S_WS))
stamp(14)
e('s_branch L_final')
lab('L_dpub')
e('s_cmp_ge_u32 s2, 224')
e('s_cbranch_scc1 L_nodpubA')
e('s_sub_u32 s58, s%d, 4' % S_WAVE)
e('s_lshl_b32 s46, s58, 9')
e('v_lshrrev_b32 v6, 5, v1')
e('v_lshlrev_b32 v6, 11, v6')
e('v_and_b32 v7, 31, v1')
e('v_lshl_add_u32 v6, v7, 4, v6')
e('v_add_u32 v6, s46, v6')
e('ds_read_b128 v[12:15], v6 offset:%d' % P3)
e('ds_read_b128 v[16:19], v6 offset:%d' % (P3 + 4096))
e('s_lshl_b32 s44, s58, 18')
e('s_and_b32 s45, s2, 3')
e('s_lshl_b32 s45, s45, 16')
e('s_add_u32 s44, s44, s45')
e('s_lshr_b32 s45, s2, 2')
e('s_lshl_b32 s45, s45, 6')
e('s_add_u32 s44, s44, s45')
e('s_add_u32 s44, s44, %d' % DP)
e('v_lshrrev_b32 v7, 2, v1')
e('v_lshlrev_b32 v7, 12, v7')
e('v_and_b32 v5, 3, v1')
e('v_lshl_add_u32 v7, v5, 4, v7')
e('v_add_u32 v7, s44, v7')
e('s_waitcnt lgkmcnt(0)')
for k in range(4):
    e('v_add_f32 v%d, v%d, v%d' % (12 + k, 12 + k, 16 + k))
addtag([12, 13, 14, 15])
e('global_store_dwordx4 v7, v[12:15], %s sc1' % sr(S_WS))
lab('L_nodpubA')
stamp(14)

lab('L_final')
e('s_cmp_lg_u32 s%d, 0' % S_WAVE)
e('s_cbranch_scc1 L_fin2')
e('s_lshl_b32 s44, s2, 12')
e('v_lshlrev_b32 v4, 4, v1')
e('v_add_u32 v4, s44, v4')
e('v_add_u32 v18, s44, v4')
e('v_and_b32 v5, 3, v1')
e('v_lshlrev_b32 v5, 4, v5')
e('s_lshl_b32 s45, s2, 5')
e('v_lshrrev_b32 v6, 1, v5')
e('v_add_u32 v6, s45, v6')
e('global_load_dwordx2 v[16:17], v6, %s' % sr(S_X))
for k in range(4):
    e('v_mov_b32 v%d, s%d' % (VV + 44 + k, S_TG + k))
e('v_add_u32 v4, %d, v4' % DP)
e('v_add_u32 v18, %d, v18' % (SP + 4096))
def mkf(i):
    def f():
        if i < 4:
            if i == 3:
                e('s_mov_b32 exec_hi, 0')
            e('global_load_dwordx4 %s, v4, %s offset:%d sc1' % (vr(VV + 32 + 4 * i), sr(S_WS), i * 1024))
            if i == 3:
                e('s_mov_b64 exec, -1')
        else:
            e('global_load_dwordx4 %s, v18, %s offset:%d sc1' % (vr(VV + 4 * (i - 4)), sr(S_WS), (i - 4) * 1024 - 4096))
    return f
if OPT['fpp']:
    spin_loop(mkf(11), [VV + 28], 8, 10, sleep=OPT['fslp'])
spin_each([mkf(i) for i in range(12)], [VV + 4 * i for i in range(12)], 8, 10, sleep=OPT['fslp'])
stamp(9)
untag([VV + 4 * i for i in range(12)])
for k in range(4):
    e('v_add_f32 v%d, v%d, v%d' % (8 + k, VV + k, VV + 4 + k))
    e('v_add_f32 v%d, v%d, v%d' % (12 + k, VV + 32 + k, VV + 36 + k))
for i in range(2, 8):
    for k in range(4):
        e('v_add_f32 v%d, v%d, v%d' % (8 + k, 8 + k, VV + 4 * i + k))
        if i < 4:
            e('v_add_f32 v%d, v%d, v%d' % (12 + k, 12 + k, VV + 32 + 4 * i + k))
for sh in (8, 4):
    e('s_nop 1')
    for rg in range(8, 16):
        e('v_add_f32_dpp v%d, v%d, v%d row_ror:%d row_mask:0xf bank_mask:0xf' % (rg, rg, rg, sh))
xrow_batch('add', list(range(8, 16)), [TMP + 8 + k for k in range(8)])
e('s_mov_b32 s44, 0x%x' % (LOG2E | 0x80000000))
e('v_lshlrev_b32 v%d, 16, v16' % TMP)
e('v_and_b32 v%d, 0xffff0000, v16' % (TMP + 1))
e('v_lshlrev_b32 v%d, 16, v17' % (TMP + 2))
e('v_and_b32 v%d, 0xffff0000, v17' % (TMP + 3))
for k in range(8):
    bf16_round(8 + k, 8 + k)
A_ = TMP + 8
for k in range(4):
    e('v_mul_f32 v%d, s44, v%d' % (A_ + k, 12 + k))
for k in range(4):
    e('v_exp_f32 v%d, v%d' % (A_ + k, A_ + k))
for k in range(4):
    e('v_add_f32 v%d, 1.0, v%d' % (A_ + k, A_ + k))
for k in range(4):
    e('v_rcp_f32 v%d, v%d' % (A_ + k, A_ + k))
for k in range(4):
    e('v_mul_f32 v%d, v%d, v%d' % (A_ + k, 12 + k, A_ + k))
for k in range(4):
    bf16_round(A_ + k, A_ + k)
for k in range(4):
    e('v_mul_f32 v%d, v%d, v%d' % (A_ + k, 8 + k, A_ + k))
for k in range(4):
    bf16_round(A_ + k, A_ + k)
for k in range(4):
    e('v_add_f32 v%d, v%d, v%d' % (TMP + k, TMP + k, A_ + k))
e('v_cvt_pk_bf16_f32 v12, v%d, v%d' % (TMP, TMP + 1))
e('v_cvt_pk_bf16_f32 v13, v%d, v%d' % (TMP + 2, TMP + 3))
e('s_mov_b64 exec, 0xf')
e('global_store_dwordx2 v6, v[12:13], %s' % sr(S_OUT))
lab('L_fin2')
if OPT['dbg']:
    e('s_cmp_lg_u32 s%d, 0' % S_WAVE)
    e('s_cbranch_scc1 L_end')
    stamp(15)
    e('s_mov_b64 exec, 1')
    e('s_waitcnt lgkmcnt(0)')
    e('v_mov_b32 v5, 0')
    for i in (0, 4, 5, 10, 12, 14, 15):
        e('s_sub_u32 s44, s%d, s%d' % (64 + 2 * i, S_TAG))
        e('s_cmp_gt_u32 s44, 100000')
        e('s_cselect_b32 s44, 0, s44')
        e('v_mov_b32 v4, s44')
        e('global_atomic_umax v5, v4, %s offset:%d' % (sr(S_DBG), 4 * (1 + i) if i < 15 else 60))
if OPT['stamps']:
    stamp(15)
    e('s_mov_b64 exec, 1')
    e('s_waitcnt lgkmcnt(0)')
    e('s_lshl_b32 s44, s2, 3')
    e('s_add_u32 s44, s44, s%d' % S_WAVE)
    e('s_lshl_b32 s44, s44, 6')
    e('s_add_u32 s44, s44, %d' % STAMPS)
    e('v_mov_b32 v5, s44')
    for i in range(16):
        e('v_mov_b32 v4, s%d' % (64 + 2 * i))
        e('global_store_dword v5, v4, %s offset:%d' % (sr(S_WS), 4 * i))
lab('L_end')
e('s_endpgm')

if OPT['pref']:
    import subprocess, re
    body = '\n'.join(x for x in L if 'PREFETCH_PLACEHOLDER' not in x)
    open('_sz.s', 'w').write('.amdgcn_target "amdgcn-amd-amdhsa--gfx950"\n.text\n' + body + '\n')
    subprocess.check_call(['clang', '-x', 'assembler', '-target', 'amdgcn-amd-amdhsa', '-mcpu=gfx950', '-c', '_sz.s', '-o', '_sz.o'])
    out = subprocess.check_output(['llvm-readelf', '-S', '_sz.o']).decode()
    tsz = int(re.search(r'\.text\s+PROGBITS\s+\S+\s+\S+\s+(\S+)', out).group(1), 16)
    nkb = (tsz - 128) // 1024
    print('code bytes', tsz, 'prefetch KB', nkb)
    pl = []
    for i in range(nkb):
        pl.append('    global_load_dwordx4 v[%d:%d], v4, s[44:45]' % (TMP + 28, TMP + 31))
        pl.append('    v_add_u32 v4, 1024, v4')
    idx = L.index('    PREFETCH_PLACEHOLDER')
    L[idx:idx + 1] = pl

hdr = open('cdna_kernels/%s.s.ref' % NAME).read().split('; Override')[0]
src = hdr
src += '; @launch grid=(256,1,1) block=(512,1,1) lds=%d\n' % LDS_BYTES
src += '.amdgcn_target "amdgcn-amd-amdhsa--gfx950"\n.text\n'
src += '.globl %s_kernel\n.p2align 8\n.type %s_kernel,@function\n%s_kernel:\n' % (NAME, NAME, NAME)
src += '\n'.join(L) + '\n'
src += '''.section .rodata,"a"
.p2align 6
.amdhsa_kernel %s_kernel
  .amdhsa_next_free_vgpr 252
  .amdhsa_next_free_sgpr 102
  .amdhsa_accum_offset %d
  .amdhsa_group_segment_fixed_size 0
  .amdhsa_kernarg_size 96
  .amdhsa_user_sgpr_count 2
  .amdhsa_user_sgpr_kernarg_segment_ptr 1
  .amdhsa_system_sgpr_workgroup_id_x 1
.end_amdhsa_kernel
''' % (NAME, NV)
open(OUT, 'w').write(src)
print('wrote', OUT, len(L), 'lines')
```
